```python
import torch

def _softmax(x, axis=-1):
    return torch.softmax(x, dim=axis)

def _gelu(x):
    return torch.nn.functional.gelu(x, approximate='tanh')

def _silu(x):
    return torch.nn.functional.silu(x)

def _sigmoid(x):
    return torch.sigmoid(x)

def _layernorm(x, axis=-1, eps=1e-05):
    m = x.mean(dim=axis, keepdim=True)
    v = x.var(dim=axis, keepdim=True, unbiased=False)
    return (x - m) / torch.sqrt(v + eps)

def _scatter_add(tgt, idx, src, axis=0):
    return tgt.clone().index_add_(axis, idx, src)

def _segment_sum(src, seg, n):
    out = torch.zeros((n,) + src.shape[1:], dtype=src.dtype)
    return out.index_add_(0, seg, src)

def _pad(x, pw):
    flat = tuple((v for pair in reversed(pw) for v in pair))
    return torch.nn.functional.pad(x, flat)
kernel_name = 'adaLN_cond__compressed_kv_cla__glu_gated_bilinear__prompt'

def setup_inputs():

    _w = lambda a: (lambda t: t.to(torch.bfloat16) if t.is_floating_point() else t)(torch.as_tensor(a))

    def _A_setup():
        B, H, Sq, Sk, D, M = (1, 32, 2048, 2048, 128, 512)
        Dc = 4 * D
        return {'x': _w((lambda *s: torch.randn(*s, dtype=torch.bfloat16) * 0.05)(B, Sq, M)), 'c_kv': _w((lambda *s: torch.randn(*s, dtype=torch.bfloat16) * 0.8)(B, Sk, Dc)), 'w_q': _w((lambda *s: torch.randn(*s, dtype=torch.bfloat16) * 1.6)(M, H, D) * M ** (-0.5)), 'w_uk': _w((lambda *s: torch.randn(*s, dtype=torch.bfloat16) * 1.6)(Dc, H, D) * Dc ** (-0.5)), 'w_uv': _w((lambda *s: torch.randn(*s, dtype=torch.bfloat16) * 0.8)(Dc, H, D) * Dc ** (-0.5)), 'w_o': _w((lambda *s: torch.randn(*s, dtype=torch.bfloat16) * 0.8)(H, D, M) * (H * D) ** (-0.5))}
    _A_in = _A_setup()

    def _B_setup():
        B, S, D, F = (1, 2048, 512, 1792)
        return {'x': _w((lambda *s: torch.randn(*s, dtype=torch.bfloat16) * 0.05)(B, S, D)), 'w_gate': _w((lambda *s: torch.randn(*s, dtype=torch.bfloat16) * 0.4)(D, F) * D ** (-0.5)), 'w_up': _w((lambda *s: torch.randn(*s, dtype=torch.bfloat16) * 0.4)(D, F) * D ** (-0.5)), 'w_down': _w((lambda *s: torch.randn(*s, dtype=torch.bfloat16) * 0.4)(F, D) * F ** (-0.5))}
    _B_in = _B_setup()
    return {'A_x': _A_in['x'], 'A_c_kv': _A_in['c_kv'], 'A_w_q': _A_in['w_q'], 'A_w_uk': _A_in['w_uk'], 'A_w_uv': _A_in['w_uv'], 'A_w_o': _A_in['w_o'], 'B_x': _B_in['x'], 'B_w_gate': _B_in['w_gate'], 'B_w_up': _B_in['w_up'], 'B_w_down': _B_in['w_down'], 'c': _w((lambda *s: torch.randn(*s, dtype=torch.bfloat16) * 0.2)(1, 512) * 8.0), 'w_mod': _w((lambda *s: torch.randn(*s, dtype=torch.bfloat16) * 0.2)(512, 6 * 512) * 512 ** (-0.5) * 8.0)}

def reference(A_x, A_c_kv, A_w_q, A_w_uk, A_w_uv, A_w_o, B_x, B_w_gate, B_w_up, B_w_down, c, w_mod):

    def _A_ref(x, c_kv, w_q, w_uk, w_uv, w_o):
        B, Sq, M = (x.shape[0], x.shape[1], x.shape[2])
        Sk = c_kv.shape[1]
        H, D = (w_q.shape[1], w_q.shape[2])
        q = torch.einsum('bqm,mhd->bhqd', x, w_q)
        k = torch.einsum('bkc,chd->bhkd', c_kv, w_uk)
        v = torch.einsum('bkc,chd->bhkd', c_kv, w_uv)
        scores = torch.einsum('bhqd,bhkd->bhqk', q, k) * D ** (-0.5)
        off = Sk - Sq
        qi = torch.arange(Sq)[:, None]
        kj = torch.arange(Sk)[None, :]
        cmask = kj <= qi + off
        scores = torch.where(cmask[None, None], scores, -1000000000.0)
        p = _softmax(scores, axis=-1)
        ctx = torch.einsum('bhqk,bhkd->bhqd', p, v)
        return torch.einsum('bhqd,hdm->bqm', ctx, w_o)

    def _B_ref(x, w_gate, w_up, w_down):
        g = torch.einsum('bsd,df->bsf', x, w_gate)
        u = torch.einsum('bsd,df->bsf', x, w_up)
        h = g * u
        return torch.einsum('bsf,fd->bsd', h, w_down)
    x = A_x
    mod = (_silu(c) @ w_mod).reshape(c.shape[0], 6, 1, -1)
    sa, ca, ga, sb, cb, gb = (mod[:, 0].clone(), mod[:, 1].clone(), mod[:, 2].clone(), mod[:, 3].clone(), mod[:, 4].clone(), mod[:, 5].clone())
    h = _layernorm(x, axis=-1) * (1 + ca) + sa
    x = x + ga * _A_ref(h, A_c_kv, A_w_q, A_w_uk, A_w_uv, A_w_o)
    h = _layernorm(x, axis=-1) * (1 + cb) + sb
    x = x + gb * _B_ref(h, B_w_gate, B_w_up, B_w_down)
    return x
```

```python
from core import *
import struct
def fh(x): return "0x%08x" % struct.unpack("<I", struct.pack("<f", x))[0]
WS = 112; O_H1, O_KI, O_VI, O_CTX = 0x10000, 0x400000, 0x1400000, 0x2400000
MB2, MB16 = 0x200000, 0x1000000
def k_attn(NF=8, LA=6):
    k = K("attn_kernel"); e = k.e
    e("s_cmp_lt_u32 s2, 256"); l = k.newlab(); e(f"s_cbranch_scc1 {l}"); e("s_endpgm"); k.label(l)
    sA = k.srd(WS, MB2, O_H1); sB = k.srd(16, 0x400000); sKI = k.srd(WS, MB16, O_KI); sVI = k.srd(WS, MB16, O_VI); sCX = k.srd(WS, MB16, O_CTX)
    vl, sw = lane_setup(k); k.srd_fin()
    sHd, sI, sI2, sJ, sKo, sM0, sG, sRw, sT, sZ, sB0, sBlk = (k.s() for _ in range(12)); sX = k.s(4); sC = k.s(2, 2); sCm = k.s(8, 2)
    e(f"s_and_b32 s{sHd}, s2, 7"); e(f"s_lshl_b32 s{sHd}, s{sHd}, 2"); e(f"s_bfe_u32 s{sT}, s2, 0x20003"); e(f"s_add_u32 s{sHd}, s{sHd}, s{sT}")
    e(f"s_lshr_b32 s{sI2}, s2, 5"); e(f"s_sub_u32 s{sI}, 15, s{sI2}")
    e(f"s_lshl_b32 s{sX}, s{sI}, 17"); e(f"s_add_u32 s{sX+1}, s{sX}, 65536"); e(f"s_lshl_b32 s{sX+2}, s{sI2}, 17"); e(f"s_add_u32 s{sX+3}, s{sX+2}, 65536")
    e(f"s_mov_b32 s{sZ}, 0"); e(f"s_lshl_b32 s{sB0}, s{sHd}, 8"); e(f"s_lshr_b32 s{sG}, s{sw}, 2"); e(f"s_and_b32 s{sRw}, s{sw}, 3")
    e(f"s_mov_b32 s{sC}, {fh(0.12751743)}"); e(f"s_mov_b32 s{sC+1}, s{sC}"); e(f"s_mov_b32 s{sBlk}, 0")
    O = k.v(64, 4); S = k.v(32, 4); P = k.v(16, 4); Q = k.v(32, 4); F = k.v(4 * NF, 4)
    vK = [k.v() for _ in range(8)]; vV = [k.v() for _ in range(4)]
    vDma, vD, vm, vmx, vt, vni, vQ, vSt = (k.v() for _ in range(8)); nm = k.v(2, 2); al = k.v(2, 2); ls = k.v(2, 2); ml = k.v(2, 2)
    g = Gemm(k, vl, sw, 8, 8, 1, 32, 128, 8, 2, 1, 128, 1024, 8192, False, 0, 1); g.setup(a_extra=lambda j: f"s{sX+j}", frbase=S)
    t0, t1, t2 = g.tmp
    e(f"v_lshlrev_b32 v{vDma}, 4, v{vl}"); e(f"s_lshl_b32 s{sM0}, s{sw}, 12"); e(f"v_add_u32 v{vDma}, s{sM0}, v{vDma}")
    e(f"v_lshrrev_b32 v{t0}, 5, v{vl}"); e(f"v_and_b32 v{t1}, 31, v{vl}"); e(f"s_lshl_b32 s{sT}, s{sG}, 14")
    e(f"v_and_b32 v{t2}, 15, v{vl}"); e(f"v_xor_b32 v{t2}, v{t2}, v{t0}"); e(f"v_lshlrev_b32 v{t2}, 4, v{t2}"); e(f"v_lshl_add_u32 v{t2}, v{t1}, 8, v{t2}"); e(f"v_add_u32 v{t2}, s{sT}, v{t2}")
    for s in range(8): e(f"v_xor_b32 v{vK[s]}, {s<<5}, v{t2}")
    e(f"s_add_u32 s{sT}, s{sT}, 32768")
    e(f"v_bfe_u32 v{t2}, v{vl}, 1, 3"); e(f"v_xor_b32 v{t2}, v{t2}, v{t0}"); e(f"v_lshlrev_b32 v{t2}, 4, v{t2}"); e(f"v_lshl_add_u32 v{t2}, v{t1}, 7, v{t2}"); e(f"v_add_u32 v{t2}, s{sT}, v{t2}")
    for s in range(4): e(f"v_xor_b32 v{vV[s]}, {s<<5}, v{t2}")
    e(f"s_lshl_b32 s{sT}, s{sRw}, 5"); e(f"v_add_u32 v{vD}, s{sT}, v{t1}"); e(f"v_lshlrev_b32 v{vSt}, 13, v{vD}"); e(f"v_lshl_add_u32 v{vSt}, v{t0}, 4, v{vSt}")
    e(f"s_lshl_b32 s{sT}, s{sG}, 6"); e(f"v_subrev_u32 v{vD}, s{sT}, v{vD}"); e(f"v_lshlrev_b32 v{t0}, 2, v{t0}"); e(f"v_sub_u32 v{vD}, v{vD}, v{t0}")
    e(f"v_mov_b32 v{vni}, 0xff800000")
    e(f"s_lshl_b32 s{sT}, s{sRw}, 13"); e(f"s_add_u32 s{sT}, s{sT}, 98304"); e(f"v_lshlrev_b32 v{vQ}, 4, v{vl}"); e(f"v_add_u32 v{vQ}, s{sT}, v{vQ}")
    def dma(buf_sgpr_expr):
        e(f"s_mov_b32 m0, s{sM0}"); e("s_nop 0")
        for i in range(4): e(f"buffer_load_dwordx4 v{vDma}, {S4(sKI)}, s{sKo} offen offset:{1024*i} lds")
        e(f"s_add_u32 m0, s{sM0}, 32768"); e("s_nop 0")
        for i in range(4): e(f"buffer_load_dwordx4 v{vDma}, {S4(sVI)}, s{sKo} offen offset:{1024*i} lds")
        e(f"s_add_u32 s{sKo}, s{sKo}, 32768"); e(f"s_xor_b32 s{sM0}, s{sM0}, 0x10000")
    g.run([[O + 16 * i for i in range(4)]], 'CT', sA, [sB], sZ, sB0)
    e("s_barrier"); e(f"s_lshl_b32 s{sKo}, s{sHd}, 19"); dma(0)
    for i in range(32): e(f"v_cvt_pk_bf16_f32 v{Q+i}, v{O+2*i}, v{O+2*i+1}")
    e(f"s_lshl_b32 s{sT}, s{sG}, 15"); e(f"v_add_u32 v{t0}, s{sT}, v{vQ}")
    for i in range(8): e(f"ds_write_b128 v{t0}, {R(Q+4*i,4)} offset:{1024*i}")
    k.lgkm0(); e("s_barrier")
    for i in range(8): e(f"ds_read_b128 {R(Q+4*i,4)}, v{vQ} offset:{1024*i}")
    e(f"s_cmp_eq_u32 s{sG}, 0"); lp = k.newlab(); e(f"s_cbranch_scc0 {lp}"); e("s_setprio 1"); k.label(lp)
    lB, lL = k.newlab("blk"), k.newlab("loop"); k.label(lB)
    for i in range(64): e(f"v_mov_b32 v{O+i}, 0")
    e(f"v_mov_b32 v{ls}, 0"); e(f"v_mov_b32 v{ls+1}, 0"); e(f"v_mov_b32 v{vm}, {fh(-1e30)}"); e(f"v_mov_b32 v{nm}, {fh(1e30)}"); e(f"v_mov_b32 v{nm+1}, {fh(1e30)}")
    e(f"s_mov_b32 s{sJ}, 0"); e("s_waitcnt vmcnt(0) lgkmcnt(0)"); e("s_barrier")
    k.label(lL); k.lq = []
    rd = [(f"ds_read_b128 {R(F+4*(n%NF),4)}, v{vK[n//2]} offset:{8192*(n%2)}", n) for n in range(16)]
    rd += [(f"ds_read_b128 {R(F+4*((16+n)%NF),4)}, v{vV[n//4]} offset:{4096*(n%4)}", 16 + n) for n in range(16)]
    for n in range(LA): k.lds(*rd[n])
    ln = k.newlab(); e(f"s_cmp_lt_u32 s{sJ}, s{sI}"); e(f"s_cbranch_scc0 {ln}"); dma(0); k.label(ln)
    for n in range(16):
        k.need({n}); d = R(S + 16 * (n % 2), 16)
        e(f"v_mfma_f32_32x32x16_bf16 {d}, {R(F+4*(n%NF),4)}, {R(Q+4*(n//2),4)}, {'0' if n < 2 else d}")
        k.lds(*rd[n + LA])
    for n in range(16 + LA, 16 + NF): k.lds(*rd[n])
    for s in range(8): e(f"v_xor_b32 v{vK[s]}, 0x10000, v{vK[s]}")
    e("s_nop 4")
    lm = k.newlab(); e(f"s_cmp_eq_u32 s{sJ}, s{sI}"); e(f"s_cbranch_scc0 {lm}")
    for i in range(8): e(f"ds_read_b128 {R(Q+4*i,4)}, v{vQ} offset:{32768+1024*i}")
    for r0 in range(0, 32, 4):
        for r in range(r0, r0 + 4): e(f"v_cmp_gt_i32 s[{sCm+2*(r%4)}:{sCm+2*(r%4)+1}], {32*(r//16)+8*((r%16)//4)+r%4}, v{vD}")
        for r in range(r0, r0 + 4): e(f"v_cndmask_b32 v{S+r}, v{S+r}, v{vni}, s[{sCm+2*(r%4)}:{sCm+2*(r%4)+1}]")
    e("s_waitcnt lgkmcnt(0)"); k.label(lm)
    e(f"v_max3_f32 v{vmx}, v{S}, v{S+1}, v{S+2}"); e(f"v_max3_f32 v{vt}, v{S+3}, v{S+4}, v{S+5}")
    for r in range(6, 30, 4):
        e(f"v_max3_f32 v{vmx}, v{vmx}, v{S+r}, v{S+r+1}"); e(f"v_max3_f32 v{vt}, v{vt}, v{S+r+2}, v{S+r+3}")
    e(f"v_max3_f32 v{vmx}, v{vmx}, v{S+30}, v{S+31}"); e(f"v_max_f32 v{vmx}, v{vmx}, v{vt}"); e(f"v_mov_b32 v{vt}, v{vmx}"); e("s_nop 1")
    e(f"v_permlane32_swap_b32 v{vt}, v{vmx}"); e("s_nop 1"); e(f"v_max_f32 v{vmx}, v{vmx}, v{vt}")
    e(f"v_fma_f32 v{vt}, v{vmx}, s{sC}, v{nm}"); e(f"v_cmp_lt_f32 vcc, {fh(8.0)}, v{vt}"); lr = k.newlab(); e("s_nop 1"); e(f"s_cbranch_vccz {lr}")
    e(f"v_mul_f32 v{vmx}, s{sC}, v{vmx}"); e(f"v_max_f32 v{vmx}, v{vmx}, v{vm}"); e(f"v_sub_f32 v{vt}, v{vm}, v{vmx}"); e(f"v_exp_f32 v{al}, v{vt}")
    e(f"v_mov_b32 v{vm}, v{vmx}"); e(f"v_sub_f32 v{nm}, 0, v{vmx}"); e(f"v_sub_f32 v{nm+1}, 0, v{vmx}"); e(f"v_mov_b32 v{al+1}, v{al}")
    e(f"v_pk_mul_f32 {R(ls,2)}, {R(ls,2)}, {R(al,2)}")
    for i in range(0, 64, 2): e(f"v_pk_mul_f32 {R(O+i,2)}, {R(O+i,2)}, {R(al,2)}")
    k.label(lr)
    def sm(q):
        b = S + 8 * q; o = []
        for i in range(0, 8, 2): o.append(f"v_pk_fma_f32 {R(b+i,2)}, {R(b+i,2)}, s[{sC}:{sC+1}], {R(nm,2)}")
        for i in range(8): o.append(f"v_exp_f32 v{b+i}, v{b+i}")
        for i in range(0, 8, 2): o.append(f"v_cvt_pk_bf16_f32 v{P+4*q+i//2}, v{b+i}, v{b+i+1}")
        for i in range(0, 8, 2): o.append(f"v_pk_add_f32 {R(ls,2)}, {R(ls,2)}, {R(b+i,2)}")
        return o
    for i in sm(0): e(i)
    for n in range(16):
        if n % 4 == 0: fill = sm(n // 4 + 1) if n < 12 else [f"v_xor_b32 v{vV[s]}, 0x10000, v{vV[s]}" for s in range(4)]
        k.need({16 + n}); d = R(O + 16 * (n % 4), 16)
        e(f"v_mfma_f32_32x32x16_bf16 {d}, {R(F+4*((16+n)%NF),4)}, {R(P+4*(n//4),4)}, {d}")
        if 16 + NF + n < 32: k.lds(*rd[16 + NF + n])
        for i in fill[5 * (n % 4):5 * (n % 4) + 5]: e(i)
    e("s_waitcnt vmcnt(0) lgkmcnt(0)"); e("s_barrier"); k.lq = []
    e(f"s_add_u32 s{sJ}, s{sJ}, 1"); e(f"s_cmp_le_u32 s{sJ}, s{sI}"); e(f"s_cbranch_scc1 {lL}")
    for r in vK + vV: e(f"v_and_b32 v{r}, 0xffff, v{r}")
    e(f"s_and_b32 s{sM0}, s{sM0}, 0xffff"); e(f"s_lshl_b32 s{sKo}, s{sHd}, 19")
    l2 = k.newlab(); e(f"s_cmp_eq_u32 s{sBlk}, 0"); e(f"s_cbranch_scc0 {l2}"); dma(0); k.label(l2)
    e(f"v_add_f32 v{ml+1}, v{ls}, v{ls+1}"); e(f"v_mov_b32 v{vt}, v{ml+1}"); e(f"v_mov_b32 v{ml}, v{vm}"); e("s_nop 0")
    e(f"v_permlane32_swap_b32 v{vt}, v{ml+1}"); e("s_nop 1"); e(f"v_add_f32 v{ml+1}, v{ml+1}, v{vt}")
    e(f"s_lshl_b32 s{sT}, s{sw}, 13"); e(f"s_add_u32 s{sT}, s{sT}, 65536"); e(f"v_lshlrev_b32 v{t0}, 4, v{vl}"); e(f"v_add_u32 v{t0}, s{sT}, v{t0}")
    e(f"s_lshl_b32 s{sT}, s{sw}, 9"); e(f"s_add_u32 s{sT}, s{sT}, 131072"); e(f"v_lshlrev_b32 v{t1}, 3, v{vl}"); e(f"v_add_u32 v{t1}, s{sT}, v{t1}")
    e(f"ds_write_b64 v{t1}, {R(ml,2)}")
    lg, ld = k.newlab(), k.newlab(); e(f"s_cmp_eq_u32 s{sG}, 0"); e(f"s_cbranch_scc1 {lg}")
    for i in range(8): e(f"ds_write_b128 v{t0}, {R(O+4*i,4)} offset:{1024*i}")
    e("s_nop 1")
    for i in range(32): e(f"v_mov_b32 v{O+i}, v{O+32+i}")
    e(f"s_branch {ld}"); k.label(lg)
    for i in range(8): e(f"ds_write_b128 v{t0}, {R(O+32+4*i,4)} offset:{1024*i}")
    k.label(ld)
    e(f"v_xor_b32 v{t0}, 0x8000, v{t0}"); e(f"v_xor_b32 v{t1}, 0x800, v{t1}"); e("s_waitcnt lgkmcnt(0)"); e("s_barrier")
    e(f"ds_read_b64 {R(ls,2)}, v{t1}")
    for i in range(8): e(f"ds_read_b128 {R(S+4*i,4)}, v{t0} offset:{1024*i}")
    e("s_waitcnt lgkmcnt(8)")
    e(f"v_max_f32 v{vmx}, v{ml}, v{ls}"); e(f"v_sub_f32 v{al}, v{ml}, v{vmx}"); e(f"v_sub_f32 v{nm}, v{ls}, v{vmx}")
    e(f"v_exp_f32 v{al}, v{al}"); e(f"v_exp_f32 v{nm}, v{nm}"); e("s_nop 0")
    e(f"v_mul_f32 v{vt}, v{al}, v{ml+1}"); e(f"v_fmac_f32 v{vt}, v{nm}, v{ls+1}"); e(f"v_rcp_f32 v{vt}, v{vt}"); e("s_nop 0")
    e(f"v_mul_f32 v{al}, v{al}, v{vt}"); e(f"v_mul_f32 v{nm}, v{nm}, v{vt}"); e(f"v_mov_b32 v{al+1}, v{al}"); e(f"v_mov_b32 v{nm+1}, v{nm}")
    e(f"s_lshl_b32 s{sT}, s{sI}, 20"); e(f"s_add_u32 s{sT}, s{sT}, s{sB0}"); e(f"s_lshl_b32 s{sJ}, s{sG}, 7"); e(f"s_add_u32 s{sT}, s{sT}, s{sJ}")
    e("s_waitcnt lgkmcnt(0)")
    for q in range(4):
        for i in range(8 * q, 8 * q + 8, 2):
            e(f"v_pk_mul_f32 {R(O+i,2)}, {R(O+i,2)}, {R(al,2)}"); e(f"v_pk_fma_f32 {R(O+i,2)}, {R(S+i,2)}, {R(nm,2)}, {R(O+i,2)}")
            e(f"v_cvt_pk_bf16_f32 v{P+i//2}, v{O+i}, v{O+i+1}")
        e(f"buffer_store_dwordx4 {R(P+4*q,4)}, v{vSt}, {S4(sCX)}, s{sT} offen offset:{32*q}")
    e(f"s_mov_b32 s{sI}, s{sI2}"); e(f"s_add_u32 s{sBlk}, s{sBlk}, 1"); e(f"s_cmp_eq_u32 s{sBlk}, 1"); e(f"s_cbranch_scc1 {lB}")
    e("s_endpgm"); return k, "grid=(256,1,1) block=(512,1,1) lds=163840"
```

```python
class K:
    def __init__(self, name):
        self.name = name; self.L = []; self.vn = 1; self.sn = 4; self.lq = []; self.lab = 0; self.vmax = 1
    def e(self, s): self.L.append("    " + s)
    def c(self, s): self.L.append("    ; " + s)
    def label(self, l): self.L.append(l + ":")
    def newlab(self, p="L"):
        self.lab += 1; return f"{self.name}_{p}{self.lab}"
    def v(self, n=1, al=1):
        self.vn = (self.vn + al - 1) // al * al; r = self.vn; self.vn += n
        self.vmax = max(self.vmax, self.vn); assert self.vn <= 256, "vgpr overflow"; return r
    def s(self, n=1, al=1):
        self.sn = (self.sn + al - 1) // al * al; r = self.sn; self.sn += n; assert self.sn <= 100; return r
    def lds(self, ins, tag=None): self.e(ins); self.lq.append(tag)
    def need(self, tags):
        idx = -1
        for i, t in enumerate(self.lq):
            if t in tags: idx = i
        if idx < 0: return
        n = min(len(self.lq) - 1 - idx, 15)
        self.e(f"s_waitcnt lgkmcnt({n})"); self.lq = self.lq[len(self.lq) - n:] if n else []
    def lgkm0(self): self.e("s_waitcnt lgkmcnt(0)"); self.lq = []
    def srd(self, argoff, nbytes, add=0):
        r = self.s(4, 4); self.e(f"s_load_dwordx2 s[{r}:{r+1}], s[0:1], {argoff}")
        self.pend = getattr(self, 'pend', []) + [(r, nbytes, add)]; return r
    def srd_fin(self):
        self.e("s_waitcnt lgkmcnt(0)")
        for r, nb, add in self.pend:
            if add:
                self.e(f"s_add_u32 s{r}, s{r}, {add:#x}"); self.e(f"s_addc_u32 s{r+1}, s{r+1}, 0")
            self.e(f"s_and_b32 s{r+1}, s{r+1}, 0xffff")
            self.e(f"s_mov_b32 s{r+2}, {nb:#x}"); self.e(f"s_mov_b32 s{r+3}, 0x20000")
        self.pend = []
    def text(self, sgpr=100):
        nv = (self.vmax + 7) // 8 * 8
        h = [f".globl {self.name}", ".p2align 8", f".type {self.name},@function", f"{self.name}:"]
        d = [f".amdhsa_kernel {self.name}", f"  .amdhsa_next_free_vgpr {nv}", f"  .amdhsa_next_free_sgpr {sgpr}",
             f"  .amdhsa_accum_offset {nv}", "  .amdhsa_group_segment_fixed_size 0", "  .amdhsa_kernarg_size 120",
             "  .amdhsa_user_sgpr_count 2", "  .amdhsa_user_sgpr_kernarg_segment_ptr 1",
             "  .amdhsa_system_sgpr_workgroup_id_x 1", ".end_amdhsa_kernel"]
        return "\n".join(h + self.L), "\n".join([".p2align 6"] + d)

def R(b, n): return f"v[{b}:{b+n-1}]"
def S4(b): return f"s[{b}:{b+3}]"

def lane_setup(k):
    vl = k.v(); sw = k.s()
    k.e(f"v_lshrrev_b32 v{vl}, 6, v0"); k.e("s_nop 0"); k.e(f"v_readfirstlane_b32 s{sw}, v{vl}")
    k.e(f"v_and_b32 v{vl}, 63, v0")
    return vl, sw

class Gemm:
    def __init__(g, k, vl, sw, NW, WGM, WGN, WM, WN, KT, NS, G, BW, lda, ldb, perm, Tmul, Tadd, base=0):
        g.__dict__.update(locals()); del g.__dict__['g']
        g.BM = WGM * WM; g.BN = WGN * WN; g.nM = WM // 32; g.nN = WN // 32
        g.nB = g.BN // BW; g.ASZ = g.BM * 128; g.SUB = 64 * BW * 2; g.STG = g.ASZ + g.nB * g.SUB
        g.LA = g.BM // 8 // NW; g.CPR = BW // 8; g.LB = g.nB * g.CPR // NW; g.L = g.LA + g.LB
        g.nwin = (base + NS * g.STG + 65535) // 65536
    def setup(g, a_extra=None, b_extra=None, frbase=None):
        k, vl, sw = g.k, g.vl, g.sw
        t0, t1, t2 = k.v(), k.v(), k.v(); g.tmp = (t0, t1, t2)
        g.sW = k.s(); k.e(f"s_lshl_b32 s{g.sW}, s{sw}, 10")
        g.swm, g.swn = k.s(), k.s(); st = k.s(); st2 = k.s(); g.st = st
        lg = g.WGN.bit_length() - 1
        k.e(f"s_lshr_b32 s{g.swm}, s{sw}, {lg}"); k.e(f"s_and_b32 s{g.swn}, s{sw}, {g.WGN-1}")
        g.vAo = [k.v() for _ in range(g.LA)]
        k.e(f"s_lshl_b32 s{st}, s{sw}, 2")
        k.e(f"v_lshrrev_b32 v{t0}, 4, v{vl}"); k.e(f"v_add_u32 v{t0}, s{st}, v{t0}")
        k.e(f"v_xor_b32 v{t0}, v{t0}, v{vl}"); k.e(f"v_and_b32 v{t0}, 7, v{t0}"); k.e(f"v_lshlrev_b32 v{t0}, 4, v{t0}")
        k.e(f"s_lshl_b32 s{st}, s{sw}, 3")
        k.e(f"v_lshrrev_b32 v{t1}, 3, v{vl}"); k.e(f"v_add_u32 v{t1}, s{st}, v{t1}")
        k.e(f"s_mov_b32 s{st}, {g.lda}"); k.e(f"v_mul_lo_u32 v{t1}, v{t1}, s{st}")
        k.e(f"v_add_u32 v{g.vAo[0]}, v{t0}, v{t1}")
        for j in range(g.LA - 1, -1, -1):
            ex = a_extra(j) if a_extra else 8 * g.NW * j * g.lda
            if ex != 0 or j: k.e(f"v_add_u32 v{g.vAo[j]}, {ex}, v{g.vAo[0]}")
        RB = 64 // g.CPR; lc = g.CPR.bit_length() - 1
        g.vBo = [k.v() for _ in range(g.LB)]
        k.e(f"v_lshrrev_b32 v{t1}, {lc}, v{vl}")
        if g.BW == 128: k.e(f"v_lshlrev_b32 v{t0}, 2, v{t1}")
        else: k.e(f"v_lshlrev_b32 v{t0}, 1, v{t1}"); k.e(f"v_and_b32 v{t0}, 4, v{t0}")
        k.e(f"v_xor_b32 v{t0}, v{t0}, v{vl}"); k.e(f"v_and_b32 v{t0}, {g.CPR-1}, v{t0}"); k.e(f"v_lshlrev_b32 v{t0}, 4, v{t0}")
        k.e(f"s_mul_i32 s{st}, s{sw}, {RB}"); k.e(f"v_add_u32 v{t1}, s{st}, v{t1}")
        k.e(f"s_mov_b32 s{st}, {g.ldb}"); k.e(f"v_mul_lo_u32 v{t1}, v{t1}, s{st}")
        k.e(f"v_add_u32 v{g.vBo[0]}, v{t0}, v{t1}")
        g.bsub = []
        for j in range(g.LB - 1, -1, -1):
            sub = g.NW * j // g.CPR; io = g.NW * j % g.CPR; g.bsub.insert(0, sub)
            ex = RB * io * g.ldb + (b_extra(sub) if b_extra else sub * g.BW * 2)
            if ex != 0 or j: k.e(f"v_add_u32 v{g.vBo[j]}, {ex}, v{g.vBo[0]}")
        g.vA = [[k.v() for _ in range(4)] for _ in range(g.nwin)]
        k.e(f"v_lshrrev_b32 v{t0}, 5, v{vl}"); k.e(f"v_bfe_u32 v{t1}, v{vl}, 1, 3"); k.e(f"v_xor_b32 v{t0}, v{t0}, v{t1}")
        k.e(f"v_lshlrev_b32 v{t0}, 4, v{t0}"); k.e(f"v_and_b32 v{t1}, 31, v{vl}"); k.e(f"v_lshl_add_u32 v{t0}, v{t1}, 7, v{t0}")
        k.e(f"s_mul_i32 s{st}, s{g.swm}, {g.WM*128}"); k.e(f"v_add_u32 v{t0}, s{st}, v{t0}")
        for w in range(g.nwin):
            for s in range(4):
                k.e(f"v_xor_b32 v{g.vA[w][s]}, {s<<5}, v{t0}")
                if w: k.e(f"v_add_u32 v{g.vA[w][s]}, {w*65536}, v{g.vA[w][s]}")
        rb = g.BW * 2; tpb = g.BW // 32
        g.vB = [[k.v() for _ in range(g.nN)] for _ in range(g.nwin)]
        k.e(f"v_lshrrev_b32 v{t0}, 5, v{vl}"); k.e(f"v_lshlrev_b32 v{t0}, {2 if g.perm else 3}, v{t0}")
        k.e(f"v_bfe_u32 v{t1}, v{vl}, 2, 2"); k.e(f"v_add_u32 v{t0}, v{t0}, v{t1}")
        k.e(f"v_mul_u32_u24 v{t0}, {rb}, v{t0}")
        k.e(f"v_bfe_u32 v{t2}, v{vl}, 4, 1"); k.e(f"v_lshl_add_u32 v{t0}, v{t2}, 5, v{t0}")
        k.e(f"v_and_b32 v{t2}, 3, v{vl}"); k.e(f"v_lshl_add_u32 v{t0}, v{t2}, 3, v{t0}")
        if g.BW == 64: k.e(f"v_lshrrev_b32 v{t1}, 1, v{t1}")
        for ni in range(g.nN):
            k.e(f"s_mul_i32 s{st}, s{g.swn}, {g.Tmul}"); k.e(f"s_add_u32 s{st}, s{st}, {g.Tadd*ni}")
            k.e(f"s_and_b32 s{st2}, s{st}, {tpb-1}"); k.e(f"v_xor_b32 v{t2}, s{st2}, v{t1}")
            k.e(f"v_lshl_add_u32 v{t2}, v{t2}, 6, v{t0}")
            k.e(f"s_lshr_b32 s{st}, s{st}, {tpb.bit_length()-1}"); k.e(f"s_mul_i32 s{st}, s{st}, {g.SUB}")
            for w in range(g.nwin):
                k.e(f"v_add_u32 v{g.vB[w][ni]}, s{st}, v{t2}")
                if w: k.e(f"v_add_u32 v{g.vB[w][ni]}, {w*65536}, v{g.vB[w][ni]}")
        g.sKA, g.sKB = k.s(), k.s()
        sv = k.vn
        if frbase: k.vn = frbase
        g.fr = [[[k.v(4, 2) for _ in range(g.nM + g.nN)] for _ in range(g.G)] for _ in range(2)]
        if frbase: k.vn = sv
    def loads(g, kt, srdA, srdB, sA0, sB0):
        sb = g.base + (kt % g.NS) * g.STG; out = []
        for j in range(g.LA):
            f = [f"s_add_u32 s{g.sKA}, s{sA0}, {kt*128}"] if j == 0 else []
            f += [f"s_add_u32 m0, s{g.sW}, {sb + g.NW*j*1024}", "s_nop 0",
                  f"buffer_load_dwordx4 v{g.vAo[j]}, {S4(srdA)}, s{g.sKA} offen lds"]
            out.append(f)
        for j in range(g.LB):
            f = [f"s_add_u32 s{g.sKB}, s{sB0}, {kt*64*g.ldb}"] if j == 0 else []
            f += [f"s_add_u32 m0, s{g.sW}, {sb + g.ASZ + g.NW*j*1024}", "s_nop 0",
                  f"buffer_load_dwordx4 v{g.vBo[j]}, {S4(srdB[g.bsub[j]])}, s{g.sKB} offen lds"]
            out.append(f)
        return out
    def reads(g, kt, b):
        bi = (kt * (4 // g.G) + b) % 2; sb = g.base + (kt % g.NS) * g.STG; out = []
        order = []
        for i in range(max(g.nM, g.nN)):
            if i < g.nM: order.append(('a', i))
            if i < g.nN: order.append(('b', i))
        for gi in range(g.G):
            s = b * g.G + gi
            for ty, i in order:
                if ty == 'a':
                    off = sb + i * 4096; w = off // 65536
                    if (off + (g.WGM-1) * g.WM * 128 + 4096) > 65536 * (w + 1) + 65536: raise Exception
                    out.append((f"ds_read_b128 {R(g.fr[bi][gi][i],4)}, v{g.vA[w][s]} offset:{off - w*65536}", (bi, gi, i)))
                else:
                    for p in range(2):
                        off = sb + g.ASZ + (16 * s + p * (8 if g.perm else 4)) * g.BW * 2; w = off // 65536
                        out.append((f"ds_read_b64_tr_b16 {R(g.fr[bi][gi][g.nM+i]+2*p,2)}, v{g.vB[w][i]} offset:{off - w*65536}", (bi, gi, g.nM + i)))
        return out
    def run(g, acc, orient, srdA, srdB, sA0, sB0, tail=None, rpm=2):
        k = g.k; nb = 4 // g.G
        for kt in range(min(g.NS, g.KT)):
            for f in g.loads(kt, srdA, srdB, sA0, sB0):
                for i in f: k.e(i)
        k.e(f"s_waitcnt vmcnt({(min(g.NS, g.KT)-1)*g.L})"); k.e("s_barrier")
        for ins, tag in g.reads(0, 0): k.lds(ins, tag)
        fill = []
        for kt in range(g.KT):
            for b in range(nb):
                bi = (kt * nb + b) % 2; rd = []
                if b < nb - 1: rd = g.reads(kt, b + 1)
                elif kt + 1 < g.KT:
                    for f in fill:
                        for i in f: k.e(i)
                    fill = []
                    k.lgkm0()
                    k.e(f"s_waitcnt vmcnt({(min(kt+g.NS-1, g.KT-1)-(kt+1))*g.L})"); k.e("s_barrier")
                    rd = g.reads(kt + 1, 0)
                    if kt + g.NS < g.KT: fill = g.loads(kt + g.NS, srdA, srdB, sA0, sB0)
                    elif kt + 2 == g.KT and tail: fill = list(tail)
                    for ins, tag in rd: k.lds(ins, tag)
                    rd = []
                for gi in range(g.G):
                    for mi in range(g.nM):
                        for ni in range(g.nN):
                            k.need({(bi, gi, mi), (bi, gi, g.nM + ni)})
                            fa, fb = R(g.fr[bi][gi][mi], 4), R(g.fr[bi][gi][g.nM + ni], 4)
                            if orient == 'CT': fa, fb = fb, fa
                            first = (kt == 0 and b == 0 and gi == 0)
                            d = R(acc[mi][ni], 16)
                            k.e(f"v_mfma_f32_32x32x16_bf16 {d}, {fa}, {fb}, {'0' if first else d}")
                            for _ in range(rpm):
                                if rd: ins, tag = rd.pop(0); k.lds(ins, tag)
                            if not rd and fill:
                                for i in fill.pop(0): k.e(i)
                for ins, tag in rd: k.lds(ins, tag)
        for f in fill:
            for i in f: k.e(i)
        k.e("s_nop 15")
```

```python
import sys, os
sys.path.insert(0, os.path.dirname(__file__))
from core import *
NAME = "adaLN_cond__compressed_kv_cla__glu_gated_bilinear__prompt"
WS = 112
O_MOD, O_H1, O_KI, O_VI, O_CTX, O_PART, O_X1, O_H2, O_HH = 0, 0x10000, 0x400000, 0x1400000, 0x2400000, 0x3400000, 0x4400000, 0x4600000, 0x4800000
MB2, MB16 = 0x200000, 0x1000000
LOG2E = 1.4426950408889634
import struct
def fh(x): return "0x%08x" % struct.unpack("<I", struct.pack("<f", x))[0]

def guard(k, n):
    k.e(f"s_cmp_lt_u32 s2, {n}"); l = k.newlab(); k.e(f"s_cbranch_scc1 {l}"); k.e("s_endpgm"); k.label(l)
def wave_sum(k, v, t):
    for r in (8, 4, 2, 1):
        k.e("s_nop 1"); k.e(f"v_add_f32_dpp v{v}, v{v}, v{v} row_ror:{r} row_mask:0xf bank_mask:0xf")
    for p in (16, 32):
        k.e(f"v_mov_b32 v{t}, v{v}"); k.e("s_nop 1"); k.e(f"v_permlane{p}_swap_b32 v{t}, v{v}"); k.e("s_nop 1"); k.e(f"v_add_f32 v{v}, v{v}, v{t}")
def unpack8(k, src, dst):
    for i in range(4):
        k.e(f"v_lshlrev_b32 v{dst+2*i}, 16, v{src+i}"); k.e(f"v_and_b32 v{dst+2*i+1}, 0xffff0000, v{src+i}")
def pack(k, src, dst, n):
    for i in range(n): k.e(f"v_cvt_pk_bf16_f32 v{dst+i}, v{src+2*i}, v{src+2*i+1}")
def layernorm(k, x, sh, sc, t, out):
    a, b = t, t + 1
    k.e(f"v_add_f32 v{a}, v{x}, v{x+1}")
    for i in range(2, 8): k.e(f"v_add_f32 v{a}, v{a}, v{x+i}")
    wave_sum(k, a, b); k.e(f"v_mul_f32 v{a}, {fh(1/512)}, v{a}")
    for i in range(8): k.e(f"v_sub_f32 v{x+i}, v{x+i}, v{a}")
    k.e(f"v_mul_f32 v{a}, v{x}, v{x}")
    for i in range(1, 8): k.e(f"v_fmac_f32 v{a}, v{x+i}, v{x+i}")
    wave_sum(k, a, b); k.e(f"v_mov_b32 v{b}, {fh(1e-5)}"); k.e(f"v_fmac_f32 v{b}, {fh(1/512)}, v{a}")
    k.e(f"v_rsq_f32 v{a}, v{b}"); k.e("s_nop 0")
    for i in range(8):
        k.e(f"v_mul_f32 v{x+i}, v{x+i}, v{a}"); k.e(f"v_add_f32 v{sc+i}, 1.0, v{sc+i}"); k.e(f"v_fma_f32 v{x+i}, v{x+i}, v{sc+i}, v{sh+i}")
    pack(k, x, out, 4)

def k_mod():
    k = K("mod_kernel"); guard(k, 96)
    sC = k.srd(80, 1024); sW = k.srd(88, 512 * 6144); sM = k.srd(WS, 12288, O_MOD); k.srd_fin()
    vkr, vo, vt = k.v(), k.v(), k.v(); cv = k.v(8); w = k.v(32, 4); acc = k.v(8, 4); u = k.v(2); s0 = k.s()
    k.e(f"v_lshrrev_b32 v{vkr}, 2, v0"); k.e(f"v_lshlrev_b32 v{vt}, 1, v{vkr}")
    for i in range(8): k.e(f"buffer_load_ushort v{cv+i}, v{vt}, {S4(sC)}, 0 offen offset:{128*i}")
    k.e(f"v_mul_u32_u24 v{vo}, 6144, v{vkr}"); k.e(f"v_and_b32 v{vt}, 3, v0"); k.e(f"v_lshl_add_u32 v{vo}, v{vt}, 4, v{vo}")
    k.e(f"s_lshl_b32 s{s0}, s2, 6")
    for i in range(8):
        k.e(f"buffer_load_dwordx4 {R(w+4*i,4)}, v{vo}, {S4(sW)}, s{s0} offen"); k.e(f"s_add_u32 s{s0}, s{s0}, {64*6144}")
    k.e("s_waitcnt vmcnt(8)")
    for i in range(8):
        c = cv + i
        k.e(f"v_lshlrev_b32 v{c}, 16, v{c}"); k.e(f"v_mul_f32 v{u}, {fh(-LOG2E)}, v{c}"); k.e(f"v_exp_f32 v{u}, v{u}"); k.e("s_nop 0")
        k.e(f"v_add_f32 v{u}, 1.0, v{u}"); k.e(f"v_rcp_f32 v{u}, v{u}"); k.e("s_nop 0"); k.e(f"v_mul_f32 v{c}, v{c}, v{u}")
        k.e(f"v_cvt_pk_bf16_f32 v{c}, v{c}, v{c}"); k.e(f"v_and_b32 v{c}, 0xffff0000, v{c}")
    for j in range(8): k.e(f"v_mov_b32 v{acc+j}, 0")
    for i in range(8):
        k.e(f"s_waitcnt vmcnt({7-i})")
        for j in range(4):
            k.e(f"v_lshlrev_b32 v{u}, 16, v{w+4*i+j}"); k.e(f"v_and_b32 v{u+1}, 0xffff0000, v{w+4*i+j}")
            k.e(f"v_fmac_f32 v{acc+2*j}, v{u}, v{cv+i}"); k.e(f"v_fmac_f32 v{acc+2*j+1}, v{u+1}, v{cv+i}")
    k.e(f"v_lshlrev_b32 v{vt}, 5, v0")
    k.e(f"ds_write_b128 v{vt}, {R(acc,4)}"); k.e(f"ds_write_b128 v{vt}, {R(acc+4,4)} offset:16")
    k.e("s_waitcnt lgkmcnt(0)"); k.e("s_barrier")
    k.e(f"v_lshrrev_b32 v{vt}, 5, v0"); k.e(f"v_lshlrev_b32 v{vt}, 10, v{vt}"); k.e(f"v_and_b32 v{vo}, 31, v0"); k.e(f"v_lshlrev_b32 v{vo}, 2, v{vo}")
    k.e(f"v_add_u32 v{vt}, v{vt}, v{vo}")
    for i in range(8): k.e(f"ds_read_b32 v{acc+i}, v{vt} offset:{128*i}")
    k.e("s_waitcnt lgkmcnt(0)")
    for i in range(1, 8): k.e(f"v_add_f32 v{acc}, v{acc}, v{acc+i}")
    k.e(f"v_lshlrev_b32 v{vt}, 2, v0"); k.e(f"ds_write_b32 v{vt}, v{acc} offset:8192")
    k.e("s_waitcnt lgkmcnt(0)"); k.e("s_barrier")
    for i in range(8): k.e(f"ds_read_b32 v{acc+i}, v{vo} offset:{8192+128*i}")
    k.e("s_waitcnt lgkmcnt(0)")
    for i in range(1, 8): k.e(f"v_add_f32 v{acc}, v{acc}, v{acc+i}")
    k.e(f"v_cvt_pk_bf16_f32 v{acc}, v{acc}, v{acc}"); k.e(f"v_and_b32 v{acc}, 0xffff0000, v{acc}")
    k.e(f"s_lshl_b32 s{s0}, s2, 7")
    k.e(f"buffer_store_dword v{acc}, v{vo}, {S4(sM)}, s{s0} offen")
    k.e("s_endpgm"); return k, "grid=(96,1,1) block=(256,1,1) lds=9216"

def k_kv():
    k = K("kv_kernel"); guard(k, 256)
    sX = k.srd(0, MB2); sA = k.srd(8, MB2); sUK = k.srd(24, 0x400000); sUV = k.srd(32, 0x400000)
    sM = k.srd(WS, 12288, O_MOD); sH = k.srd(WS, MB2, O_H1); sKI = k.srd(WS, MB16, O_KI); sVI = k.srd(WS, MB16, O_VI)
    vl, sw = lane_setup(k); k.srd_fin()
    xr = k.v(4, 4); sh = k.v(8, 4); sc = k.v(8, 4); v16, v32 = k.v(), k.v(); sRow = k.s()
    k.e(f"v_lshlrev_b32 v{v16}, 4, v{vl}"); k.e(f"v_lshlrev_b32 v{v32}, 5, v{vl}")
    k.e(f"s_lshl_b32 s{sRow}, s2, 3"); k.e(f"s_add_u32 s{sRow}, s{sRow}, s{sw}"); k.e(f"s_lshl_b32 s{sRow}, s{sRow}, 10")
    k.e(f"buffer_load_dwordx4 {R(xr,4)}, v{v16}, {S4(sX)}, s{sRow} offen")
    for i, d in enumerate((sh, sc)):
        for h in range(2): k.e(f"buffer_load_dwordx4 {R(d+4*h,4)}, v{v32}, {S4(sM)}, 0 offen offset:{2048*i+16*h}")
    g = Gemm(k, vl, sw, 8, 2, 4, 128, 64, 8, 2, 1, 128, 1024, 8192, False, 2, 1); g.setup()
    acc = [[k.v(16, 4) for _ in range(2)] for _ in range(4)]
    sMb, sNb, sA0, sB0, sO, sT = (k.s() for _ in range(6))
    k.e(f"s_bfe_u32 s{sMb}, s2, 0x30003"); k.e(f"s_and_b32 s{sNb}, s2, 7"); k.e(f"s_lshl_b32 s{sNb}, s{sNb}, 1")
    k.e(f"s_bfe_u32 s{sT}, s2, 0x10006"); k.e(f"s_add_u32 s{sNb}, s{sNb}, s{sT}")
    k.e(f"s_lshl_b32 s{sA0}, s{sMb}, 18"); k.e(f"s_lshl_b32 s{sB0}, s{sNb}, 9")
    k.e(f"s_lshr_b32 s{sT}, s{g.swn}, 1"); k.e(f"s_lshl_b32 s{sO}, s{sNb}, 1"); k.e(f"s_add_u32 s{sO}, s{sO}, s{sT}"); k.e(f"s_lshl_b32 s{sO}, s{sO}, 19")
    k.e(f"s_lshl_b32 s{sT}, s{sMb}, 16"); k.e(f"s_add_u32 s{sO}, s{sO}, s{sT}"); k.e(f"s_lshl_b32 s{sT}, s{g.swm}, 15"); k.e(f"s_add_u32 s{sO}, s{sO}, s{sT}")
    lV, lE = k.newlab(), k.newlab(); t0, t1, t2 = g.tmp; va = g.vA[0]; pk = g.fr[0][0]
    k.e("s_bitcmp1_b32 s2, 7"); k.e(f"s_cbranch_scc1 {lV}")
    for isV in (0, 1):
        if isV: k.label(lV); k.lq = []
        g.run(acc, 'C' if isV else 'CT', sA, [sUV if isV else sUK] * 2, sA0, sB0)
        k.e(f"v_lshrrev_b32 v{t0}, 5, v{vl}"); k.e(f"v_and_b32 v{t1}, 31, v{vl}"); k.e(f"s_and_b32 s{sT}, s{g.swn}, 1")
        if not isV:
            k.e(f"s_lshl_b32 s{sT}, s{sT}, 3"); k.e(f"v_xor_b32 v{t0}, s{sT}, v{t0}"); k.e(f"v_and_b32 v{t2}, 15, v{vl}"); k.e(f"v_xor_b32 v{t0}, v{t0}, v{t2}")
            k.e(f"v_lshlrev_b32 v{t0}, 4, v{t0}"); k.e(f"v_lshl_add_u32 v{t0}, v{t1}, 8, v{t0}")
        else:
            k.e(f"s_lshl_b32 s{sT}, s{sT}, 13"); k.e(f"s_add_u32 s{sO}, s{sO}, s{sT}")
            k.e(f"v_bfe_u32 v{t2}, v{vl}, 1, 3"); k.e(f"v_xor_b32 v{t0}, v{t0}, v{t2}")
            k.e(f"v_lshlrev_b32 v{t0}, 4, v{t0}"); k.e(f"v_lshl_add_u32 v{t0}, v{t1}, 7, v{t0}")
        for i in range(4): k.e(f"v_xor_b32 v{va[i]}, {i<<5}, v{t0}")
        n = 0
        for mi in range(4):
            for ni in range(2):
                off = (mi // 2) * 16384 + ni * 4096 if isV else mi * 8192
                k.e(f"s_add_u32 s{sT}, s{sO}, {off}")
                for hf in range(2):
                    p = pk[n % 6]; n += 1
                    pack(k, acc[mi][ni] + 8 * hf, p, 4)
                    k.e(f"buffer_store_dwordx4 {R(p,4)}, v{va[2*((mi%2) if isV else ni)+hf]}, {S4(sVI if isV else sKI)}, s{sT} offen")
        if not isV: k.e(f"s_branch {lE}")
    k.label(lE)
    x = acc[0][0]; unpack8(k, xr, x); layernorm(k, x, sh, sc, x + 8, x + 12)
    k.e(f"buffer_store_dwordx4 {R(x+12,4)}, v{v16}, {S4(sH)}, s{sRow} offen")
    k.e("s_endpgm"); return k, "grid=(256,1,1) block=(512,1,1) lds=131072"

def k_op():
    k = K("op_kernel"); guard(k, 256)
    sA = k.srd(WS, MB16, O_CTX); sB = k.srd(40, 0x400000); sP = k.srd(WS, MB16, O_PART)
    vl, sw = lane_setup(k); k.srd_fin()
    g = Gemm(k, vl, sw, 4, 2, 2, 64, 64, 16, 3, 2, 128, 8192, 1024, True, 2, 1); g.setup()
    acc = [[k.v(16, 4) for _ in range(2)] for _ in range(2)]
    sKs, sMb, sNb, sA0, sB0, sO, sT = (k.s() for _ in range(7))
    k.e(f"s_bfe_u32 s{sKs}, s2, 0x20001"); k.e(f"s_and_b32 s{sMb}, s2, 1"); k.e(f"s_lshl_b32 s{sMb}, s{sMb}, 3")
    k.e(f"s_bfe_u32 s{sT}, s2, 0x30003"); k.e(f"s_add_u32 s{sMb}, s{sMb}, s{sT}"); k.e(f"s_lshr_b32 s{sNb}, s2, 6")
    k.e(f"s_lshl_b32 s{sA0}, s{sMb}, 20"); k.e(f"s_lshl_b32 s{sT}, s{sKs}, 11"); k.e(f"s_add_u32 s{sA0}, s{sA0}, s{sT}")
    k.e(f"s_lshl_b32 s{sB0}, s{sKs}, 20"); k.e(f"s_lshl_b32 s{sT}, s{sNb}, 8"); k.e(f"s_add_u32 s{sB0}, s{sB0}, s{sT}")
    g.run(acc, 'CT', sA, [sB], sA0, sB0)
    t0, t1, t2 = g.tmp
    k.e(f"s_lshl_b32 s{sO}, s{sKs}, 22"); k.e(f"s_lshl_b32 s{sT}, s{sMb}, 18"); k.e(f"s_add_u32 s{sO}, s{sO}, s{sT}")
    k.e(f"s_lshl_b32 s{sT}, s{g.swm}, 17"); k.e(f"s_add_u32 s{sO}, s{sO}, s{sT}"); k.e(f"s_lshl_b32 s{sT}, s{sNb}, 9"); k.e(f"s_add_u32 s{sO}, s{sO}, s{sT}")
    k.e(f"s_lshl_b32 s{sT}, s{g.swn}, 8"); k.e(f"s_add_u32 s{sO}, s{sO}, s{sT}"); k.e(f"s_add_u32 s{sT}, s{sO}, 65536")
    k.e(f"v_lshrrev_b32 v{t0}, 5, v{vl}"); k.e(f"v_lshlrev_b32 v{t0}, 4, v{t0}"); k.e(f"v_and_b32 v{t1}, 31, v{vl}"); k.e(f"v_lshl_add_u32 v{t0}, v{t1}, 11, v{t0}")
    for mi in range(2):
        for ni in range(2):
            for q in range(4):
                k.e(f"buffer_store_dwordx4 {R(acc[mi][ni]+4*q,4)}, v{t0}, {S4(sP)}, s{sT if mi else sO} offen offset:{128*ni+32*q}")
    k.e("s_endpgm"); return k, f"grid=(256,1,1) block=(256,1,1) lds={3*g.STG}"

def k_ln2():
    k = K("ln2_kernel"); guard(k, 512)
    sX = k.srd(0, MB2); sP = k.srd(WS, MB16, O_PART); sM = k.srd(WS, 12288, O_MOD); sX1 = k.srd(WS, MB2, O_X1); sH = k.srd(WS, MB2, O_H2)
    vl, sw = lane_setup(k); k.srd_fin()
    v16, v32 = k.v(), k.v(); sRow, sT, sU = k.s(), k.s(), k.s()
    p = k.v(32, 4); xr = k.v(4, 4); ga, sh, sc, x = (k.v(8, 4) for _ in range(4)); t = k.v(2); o = k.v(4, 4); o2 = k.v(4, 4)
    k.e(f"v_lshlrev_b32 v{v16}, 4, v{vl}"); k.e(f"v_lshlrev_b32 v{v32}, 5, v{vl}")
    k.e(f"s_lshl_b32 s{sRow}, s2, 2"); k.e(f"s_add_u32 s{sRow}, s{sRow}, s{sw}"); k.e(f"s_lshl_b32 s{sRow}, s{sRow}, 10"); k.e(f"s_lshl_b32 s{sT}, s{sRow}, 1")
    for i in range(4):
        for h in range(2): k.e(f"buffer_load_dwordx4 {R(p+8*i+4*h,4)}, v{v32}, {S4(sP)}, s{sT} offen offset:{16*h}")
        k.e(f"s_add_u32 s{sT}, s{sT}, 0x400000")
    k.e(f"buffer_load_dwordx4 {R(xr,4)}, v{v16}, {S4(sX)}, s{sRow} offen")
    for i, d in enumerate((ga, sh, sc)):
        k.e(f"s_mov_b32 s{sU}, {2048*(i+2)}")
        for h in range(2): k.e(f"buffer_load_dwordx4 {R(d+4*h,4)}, v{v32}, {S4(sM)}, s{sU} offen offset:{16*h}")
    k.e("s_waitcnt vmcnt(4)")
    for i in range(1, 4):
        for j in range(8): k.e(f"v_add_f32 v{p+j}, v{p+j}, v{p+8*i+j}")
    pack(k, p, o, 4); unpack8(k, o, p); unpack8(k, xr, x)
    for j in range(8): k.e(f"v_mul_f32 v{p+j}, v{p+j}, v{ga+j}")
    pack(k, p, o, 4); unpack8(k, o, p)
    for j in range(8): k.e(f"v_add_f32 v{x+j}, v{x+j}, v{p+j}")
    pack(k, x, o, 4); unpack8(k, o, x)
    k.e(f"buffer_store_dwordx4 {R(o,4)}, v{v16}, {S4(sX1)}, s{sRow} offen"); k.e("s_waitcnt vmcnt(1)")
    k.e("s_waitcnt vmcnt(0)")
    layernorm(k, x, sh, sc, t, o2)
    k.e(f"buffer_store_dwordx4 {R(o2,4)}, v{v16}, {S4(sH)}, s{sRow} offen")
    k.e("s_endpgm"); return k, "grid=(512,1,1) block=(256,1,1) lds=0"

def k_gu():
    k = K("gu_kernel"); guard(k, 224)
    sA = k.srd(WS, MB2, O_H2); sG = k.srd(56, 512 * 3584); sU = k.srd(64, 512 * 3584); sH = k.srd(WS, 2048 * 3584, O_HH)
    vl, sw = lane_setup(k); k.srd_fin()
    g = Gemm(k, vl, sw, 8, 2, 4, 64, 64, 8, 3, 2, 128, 1024, 3584, False, 1, 4); g.setup(b_extra=lambda s: 0)
    acc = [[k.v(16, 4) for _ in range(2)] for _ in range(2)]
    sMb, sNb, sA0, sB0, sO, sT = (k.s() for _ in range(6))
    k.e(f"s_and_b32 s{sMb}, s2, 15"); k.e(f"s_lshr_b32 s{sNb}, s2, 4")
    k.e(f"s_lshl_b32 s{sA0}, s{sMb}, 17"); k.e(f"s_lshl_b32 s{sB0}, s{sNb}, 8")
    g.run(acc, 'CT', sA, [sG, sU], sA0, sB0)
    t0, t1, t2 = g.tmp; pk = g.fr[0][0]
    k.e(f"s_lshl_b32 s{sO}, s{sMb}, 1"); k.e(f"s_add_u32 s{sO}, s{sO}, s{g.swm}"); k.e(f"s_mul_i32 s{sO}, s{sO}, {64*3584}")
    k.e(f"s_add_u32 s{sO}, s{sO}, s{sB0}"); k.e(f"s_lshl_b32 s{sT}, s{g.swn}, 6"); k.e(f"s_add_u32 s{sO}, s{sO}, s{sT}"); k.e(f"s_add_u32 s{sT}, s{sO}, {32*3584}")
    k.e(f"v_lshrrev_b32 v{t0}, 5, v{vl}"); k.e(f"v_lshlrev_b32 v{t0}, 4, v{t0}"); k.e(f"v_and_b32 v{t1}, 31, v{vl}"); k.e(f"v_mul_u32_u24 v{t1}, 3584, v{t1}"); k.e(f"v_add_u32 v{t0}, v{t0}, v{t1}")
    for mi in range(2):
        for hf in range(2):
            a, b = acc[mi][0] + 8 * hf, acc[mi][1] + 8 * hf; p = pk[2 * mi + hf]
            pack(k, a, p, 4); unpack8(k, p, a); pack(k, b, p, 4); unpack8(k, p, b)
            for j in range(8): k.e(f"v_mul_f32 v{a+j}, v{a+j}, v{b+j}")
            pack(k, a, p, 4)
            k.e(f"buffer_store_dwordx4 {R(p,4)}, v{t0}, {S4(sH)}, s{sT if mi else sO} offen offset:{32*hf}")
    k.e("s_endpgm"); return k, f"grid=(224,1,1) block=(512,1,1) lds={3*g.STG}"

def k_dn():
    k = K("dn_kernel"); guard(k, 256)
    sA = k.srd(WS, 2048 * 3584, O_HH); sB = k.srd(72, 1792 * 1024); sX1 = k.srd(WS, MB2, O_X1); sM = k.srd(WS, 12288, O_MOD); sOut = k.srd(96, MB2)
    vl, sw = lane_setup(k); k.srd_fin()
    g = Gemm(k, vl, sw, 4, 2, 2, 32, 32, 28, 4, 4, 64, 3584, 1024, True, 1, 1); g.setup()
    acc = [[k.v(16, 4)]]; a = acc[0][0]; xr = k.v(8, 4); gb = k.v(16, 4); x = k.v(8, 4); vo, vg = k.v(), k.v()
    sMb, sNb, sA0, sB0, sO, sT = (k.s() for _ in range(6))
    k.e(f"s_and_b32 s{sMb}, s2, 7"); k.e(f"s_lshl_b32 s{sMb}, s{sMb}, 2"); k.e(f"s_bfe_u32 s{sT}, s2, 0x20003"); k.e(f"s_add_u32 s{sMb}, s{sMb}, s{sT}")
    k.e(f"s_lshr_b32 s{sNb}, s2, 5"); k.e(f"s_mul_i32 s{sA0}, s{sMb}, {64*3584}"); k.e(f"s_lshl_b32 s{sB0}, s{sNb}, 7")
    k.e(f"s_lshl_b32 s{sO}, s{sMb}, 16"); k.e(f"s_lshl_b32 s{sT}, s{g.swm}, 15"); k.e(f"s_add_u32 s{sO}, s{sO}, s{sT}")
    k.e(f"s_lshl_b32 s{sT}, s{g.swn}, 6"); k.e(f"s_add_u32 s{sT}, s{sT}, s{sB0}"); k.e(f"s_add_u32 s{sO}, s{sO}, s{sT}")
    k.e(f"s_lshl_b32 s{sT}, s{sT}, 1"); k.e(f"s_add_u32 s{sT}, s{sT}, {5*2048}")
    k.e(f"v_lshrrev_b32 v{vg}, 5, v{vl}"); k.e(f"v_lshlrev_b32 v{vo}, 4, v{vg}"); k.e(f"v_lshlrev_b32 v{vg}, 5, v{vg}")
    k.e(f"v_and_b32 v{x}, 31, v{vl}"); k.e(f"v_lshl_add_u32 v{vo}, v{x}, 10, v{vo}")
    for hf in range(2):
        k.e(f"buffer_load_dwordx4 {R(xr+4*hf,4)}, v{vo}, {S4(sX1)}, s{sO} offen offset:{32*hf}")
        for q in range(2): k.e(f"buffer_load_dwordx4 {R(gb+8*hf+4*q,4)}, v{vg}, {S4(sM)}, s{sT} offen offset:{64*hf+16*q}")
    g.run(acc, 'CT', sA, [sB], sA0, sB0)
    pk = g.fr[0][0]
    for hf in range(2):
        b = a + 8 * hf; p = pk[hf]
        for j in range(4): k.e(f"v_permlane32_swap_b32 v{b+j}, v{b+4+j}")
        k.e("s_nop 1"); pack(k, b, p, 4); unpack8(k, p, b)
        for j in range(8): k.e(f"v_mul_f32 v{b+j}, v{b+j}, v{gb+8*hf+j}")
        pack(k, b, p, 4); unpack8(k, p, b); unpack8(k, xr + 4 * hf, x)
        for j in range(8): k.e(f"v_add_f32 v{b+j}, v{b+j}, v{x+j}")
        pack(k, b, p, 4)
        k.e(f"buffer_store_dwordx4 {R(p,4)}, v{vo}, {S4(sOut)}, s{sO} offen offset:{32*hf}")
    k.e("s_endpgm"); return k, f"grid=(256,1,1) block=(256,1,1) lds={4*g.STG}"

from attn import k_attn
def main(out):
    ks = [k_mod(), k_kv(), k_attn(), k_op(), k_ln2(), k_gu(), k_dn()]
    ref = open(f"cdna_kernels/{NAME}.s.ref").read().split("\n")
    hdr = [l for l in ref if l.startswith(";") and "@launch" not in l][:18]
    hdr += [f"; @launch kernel={k.name} {g}" for k, g in ks]
    tx = [k.text() for k, _ in ks]
    s = "\n".join(hdr + ['.amdgcn_target "amdgcn-amd-amdhsa--gfx950"', ".text"] + [t[0] for t in tx] + ['.section .rodata,"a"'] + [t[1] for t in tx]) + "\n"
    open(out, "w").write(s)
    for k, g in ks: print(k.name, "vgpr", k.vmax, "sgpr", k.sn, "lines", len(k.L), g)
if __name__ == "__main__": main(sys.argv[1] if len(sys.argv) > 1 else f"cdna_kernels/{NAME}.s")
```

```python
from core import *
import struct
def fh(x): return "0x%08x" % struct.unpack("<I", struct.pack("<f", x))[0]
WS = 112; O_H1, O_KI, O_VI, O_CTX = 0x10000, 0x400000, 0x1400000, 0x2400000
MB2, MB16 = 0x200000, 0x1000000
import os
X = os.environ.get('X', '')
def k_attn(NF=8, LA=6):
    k = K("attn_kernel"); e = k.e
    def st():
        if os.environ.get('ST') != 'at': return
        l = k.newlab(); e(f"s_cmp_eq_u32 s{sJ}, 3"); e(f"s_cbranch_scc0 {l}"); q = list(k.lq); k.stamp(); k.lq = q; k.label(l)
    k.stamp(); e("s_cmp_lt_u32 s2, 256"); l = k.newlab(); e(f"s_cbranch_scc1 {l}"); e("s_endpgm"); k.label(l)
    sA = k.srd(WS, MB2, O_H1); sB = k.srd(16, 0x400000); sKI = k.srd(WS, MB16, O_KI); sVI = k.srd(WS, MB16, O_VI); sCX = k.srd(WS, MB16, O_CTX)
    sKV = k.srd(WS, 2 * MB16, O_KI); PFD = int(os.environ.get('PFD', '2'))
    sPF = [k.srd(40, 0x400000), k.srd(56, 512 * 3584), k.srd(64, 512 * 3584), k.srd(72, 1792 * 1024)]
    vl, sw = lane_setup(k); k.srd_fin()
    sHd, sI, sI2, sJ, sKo, sM0, sG, sRw, sT, sZ, sB0, sBlk = (k.s() for _ in range(12)); sX = k.s(4); sC = k.s(2, 2); sCm = k.s(8, 2)
    e(f"s_and_b32 s{sHd}, s2, 7"); e(f"s_lshl_b32 s{sHd}, s{sHd}, 2"); e(f"s_bfe_u32 s{sT}, s2, 0x20003"); e(f"s_add_u32 s{sHd}, s{sHd}, s{sT}")
    e(f"s_lshr_b32 s{sI2}, s2, 5"); e(f"s_sub_u32 s{sI}, 15, s{sI2}")
    e(f"s_lshl_b32 s{sX}, s{sI}, 17"); e(f"s_add_u32 s{sX+1}, s{sX}, 65536"); e(f"s_lshl_b32 s{sX+2}, s{sI2}, 17"); e(f"s_add_u32 s{sX+3}, s{sX+2}, 65536")
    e(f"s_mov_b32 s{sZ}, 0"); e(f"s_lshl_b32 s{sB0}, s{sHd}, 8"); e(f"s_lshr_b32 s{sG}, s{sw}, 2"); e(f"s_and_b32 s{sRw}, s{sw}, 3")
    e(f"s_mov_b32 s{sC}, {fh(0.12751743)}"); e(f"s_mov_b32 s{sC+1}, s{sC}")
    al = k.v(2, 2); O = k.v(64, 4); S = k.v(64, 4); P = k.v(16, 4); Q = k.v(32, 4); F = k.v(4 * NF, 4); NM = k.v(16, 4)
    vK = [k.v() for _ in range(8)]; vV = [k.v() for _ in range(4)]
    vDma, vD, vm, vmx, vt, vni, vQ, vSt, vH = (k.v() for _ in range(9)); vPF = 0; nm = NM + 2; ls = k.v(2, 2); ml = k.v(2, 2)
    e(f"s_lshl_b32 s{sT}, s2, 13"); e(f"v_lshlrev_b32 v{vPF}, 4, v0"); e(f"v_add_u32 v{vPF}, s{sT}, v{vPF}")
    sv = k.vn; k.vn = S + 40; sVo = k.s()
    g = Gemm(k, vl, sw, 8, 8, 1, 32, 128, 8, 3, 1, 128, 1024, 8192, False, 0, 1, base=16384); g.setup(a_extra=lambda j: f"s{sX+j}", frbase=S)
    assert k.vn <= Q; k.vn = sv; t0, t1, t2 = vmx, vt, vm
    e(f"v_lshlrev_b32 v{vDma}, 4, v{vl}"); e(f"s_lshl_b32 s{sM0}, s{sRw}, 12"); e(f"v_add_u32 v{vDma}, s{sM0}, v{vDma}"); e(f"s_lshl_b32 s{sM0}, s{sw}, 12")
    e(f"v_lshrrev_b32 v{t0}, 5, v{vl}"); e(f"v_and_b32 v{t1}, 31, v{vl}"); e(f"s_lshl_b32 s{sT}, s{sG}, 14")
    e(f"v_and_b32 v{t2}, 15, v{vl}"); e(f"v_xor_b32 v{t2}, v{t2}, v{t0}"); e(f"v_lshlrev_b32 v{t2}, 4, v{t2}"); e(f"v_lshl_add_u32 v{t2}, v{t1}, 8, v{t2}"); e(f"v_add_u32 v{t2}, s{sT}, v{t2}")
    for s in range(8): e(f"v_xor_b32 v{vK[s]}, {s<<5}, v{t2}")
    e(f"s_add_u32 s{sT}, s{sT}, 65536")
    e(f"v_bfe_u32 v{t2}, v{vl}, 1, 3"); e(f"v_xor_b32 v{t2}, v{t2}, v{t0}"); e(f"v_lshlrev_b32 v{t2}, 4, v{t2}"); e(f"v_lshl_add_u32 v{t2}, v{t1}, 7, v{t2}"); e(f"v_add_u32 v{t2}, s{sT}, v{t2}")
    for s in range(4): e(f"v_xor_b32 v{vV[s]}, {s<<5}, v{t2}")
    e(f"s_lshl_b32 s{sT}, s{sRw}, 5"); e(f"v_add_u32 v{vD}, s{sT}, v{t1}"); e(f"v_lshlrev_b32 v{vSt}, 13, v{vD}"); e(f"v_lshl_add_u32 v{vSt}, v{t0}, 4, v{vSt}")
    e(f"v_lshlrev_b32 v{t0}, 2, v{t0}"); e(f"v_sub_u32 v{vD}, v{vD}, v{t0}")
    e(f"s_lshl_b32 s{sT}, s{sRw}, 13"); e(f"v_lshlrev_b32 v{vH}, 7, v{vl}"); e(f"v_add_u32 v{vH}, s{sT}, v{vH}")
    e(f"s_mul_i32 s{sT}, s{sG}, {MB16-32768}"); e(f"s_add_u32 s{sT}, s{sT}, 32768"); e(f"v_add_u32 v{vH}, s{sT}, v{vH}")
    e(f"v_mov_b32 v{vni}, 0xff800000")
    e(f"s_lshl_b32 s{sT}, s{sRw}, 13"); e(f"s_add_u32 s{sT}, s{sT}, 131072"); e(f"v_lshlrev_b32 v{vQ}, 4, v{vl}"); e(f"v_add_u32 v{vQ}, s{sT}, v{vQ}")
    sNB, sJmp, sDg, sU = sBlk, sVo, k.s(), k.s()
    e(f"s_lshl_b32 s{sKo}, s{sHd}, 19"); e(f"s_lshl_b32 s{sNB}, s{sI2}, 1"); e(f"s_add_u32 s{sNB}, s{sNB}, 2"); e(f"s_sub_u32 s{sJmp}, 17, s{sNB}")
    e(f"s_cmp_eq_u32 s{sG}, 0"); e(f"s_cselect_b32 s{sNB}, 99, s{sNB}"); e(f"s_cselect_b32 s{sDg}, s{sI}, s{sI2}"); e(f"s_lshl_b32 s{sDg}, s{sDg}, 1"); e(f"s_mov_b32 s{sJ}, 0")
    def tile(add): return [f"s_add_u32 s{sT}, s{sJ}, {add}", f"s_cmp_ge_u32 s{sT}, s{sNB}", f"s_cselect_b32 s{sU}, s{sJmp}, 0", f"s_add_u32 s{sU}, s{sU}, s{sT}"]
    def dmal(isV, par, add):
        return tile(add) + [f"s_lshl_b32 s{sU}, s{sU}, 14", f"s_add_u32 m0, s{sM0}, {65536*isV + 32768*par}", f"s_add_u32 s{sU}, s{sU}, s{sKo}"] + \
            [f"buffer_load_dwordx4 v{vDma}, {S4(sVI if isV else sKI)}, s{sU} offen offset:{1024*i} lds" for i in range(4)]
    def dma(isV, par, add):
        l = k.newlab(); e(f"s_cmp_le_u32 s{sJ}, {16-add}"); e(f"s_cbranch_scc0 {l}")
        for i in dmal(isV, par, add): e(i)
        k.label(l)
    def rdK(n, par): k.lds(f"ds_read_b128 {R(F+4*(n%NF),4)}, v{vK[n//2]} offset:{32768*par+8192*(n%2)}", n)
    def rdV(n, par): k.lds(f"ds_read_b128 {R(F+4*(n%NF),4)}, v{vV[n//4]} offset:{32768*par+4096*(n%4)}", 16 + n)
    def qk(n, Sb, c0):
        k.need({n}); d = R(Sb + 16 * (n % 2), 16)
        e(f"v_mfma_f32_32x32x16_bf16 {d}, {R(F+4*(n%NF),4)}, {R(Q+4*(n//2),4)}, {c0 if n < 2 else d}")
    def pv(n):
        k.need({16 + n}); d = R(O + 16 * (n % 4), 16)
        e(f"v_mfma_f32_32x32x16_bf16 {d}, {R(F+4*(n%NF),4)}, {R(P+4*(n//4),4)}, {d}")
    def mask(Sb, add, rq):
        lm = k.newlab()
        for i in tile(add): e(i)
        e(f"s_cmp_ge_u32 s{sU}, s{sDg}"); e(f"s_cbranch_scc0 {lm}")
        e(f"s_sub_u32 s{sU}, s{sU}, s{sDg}"); e(f"s_lshl_b32 s{sU}, s{sU}, 6"); e(f"v_subrev_u32 v{vt}, s{sU}, v{vD}")
        if rq:
            l = k.newlab(); e(f"s_add_u32 s{sT}, s{sJ}, 2"); e(f"s_cmp_eq_u32 s{sT}, s{sNB}"); e(f"s_cbranch_scc0 {l}")
            for i in range(8): e(f"ds_read_b128 {R(Q+4*i,4)}, v{vQ} offset:{1024*i}")
            k.label(l)
        for r0 in range(0, 32, 4):
            for r in range(r0, r0 + 4): e(f"v_cmp_gt_i32 s[{sCm+2*(r%4)}:{sCm+2*(r%4)+1}], {32*(r//16)+8*((r%16)//4)+r%4}, v{vt}")
            for r in range(r0, r0 + 4): e(f"v_cndmask_b32 v{Sb+r}, v{Sb+r}, v{vni}, s[{sCm+2*(r%4)}:{sCm+2*(r%4)+1}]")
        e("s_waitcnt lgkmcnt(0)"); k.label(lm)
    def smx(Sb):
        o = []
        for q in range(4):
            b = Sb + 8 * q
            o += [(f"v_exp_f32 v{b+i}, v{b+i}", 2) for i in range(8)]
            o += [(f"v_cvt_pk_bf16_f32 v{P+4*q+i}, v{b+2*i}, v{b+2*i+1}", 1) for i in range(4)]
            o += [(f"v_add_f32 v{ls+i%2}, v{ls+i%2}, v{b+i}", 1) for i in range(8)]
        return o
    def rmax(Sb):
        o = [f"v_max3_f32 v{vmx}, v{Sb}, v{Sb+1}, v{Sb+2}", f"v_max3_f32 v{vt}, v{Sb+3}, v{Sb+4}, v{Sb+5}"]
        for r in range(6, 30, 4): o += [f"v_max3_f32 v{vmx}, v{vmx}, v{Sb+r}, v{Sb+r+1}", f"v_max3_f32 v{vt}, v{vt}, v{Sb+r+2}, v{Sb+r+3}"]
        o += [f"v_max3_f32 v{vmx}, v{vmx}, v{Sb+30}, v{Sb+31}", f"v_max_f32 v{vmx}, v{vmx}, v{vt}", f"v_mov_b32 v{vt}, v{vmx}", "s_nop 1",
              f"v_permlane32_swap_b32 v{vt}, v{vmx}", "s_nop 1", f"v_max_f32 v{vmx}, v{vmx}, v{vt}"]
        return [(i, 1) for i in o]
    def shift(Sb):
        e(f"v_add_f32 v{vm}, v{vm}, v{vmx}")
        for i in range(32): e(f"v_sub_f32 v{Sb+i}, v{Sb+i}, v{vmx}")
        for i in range(16): e(f"v_sub_f32 v{NM+i}, 0, v{vm}")
    g.run([[O + 16 * i for i in range(4)]], 'CT', sA, [sB], sZ, sB0, tail=[dmal(0, 0, 0), dmal(0, 1, 1)])
    for i in range(64): e(f"v_mul_f32 v{O+i}, s{sC}, v{O+i}")
    for i in range(32): e(f"v_cvt_pk_bf16_f32 v{Q+i}, v{O+2*i}, v{O+2*i+1}")
    e("s_waitcnt vmcnt(0)"); e("s_barrier"); k.stamp()
    e(f"s_cmp_eq_u32 s{sG}, 0"); lp = k.newlab(); e(f"s_cbranch_scc0 {lp}")
    for i in range(8): e(f"ds_write_b128 v{vQ}, {R(Q+4*i,4)} offset:{1024*i}")
    k.label(lp); k.lq = []
    if "p" not in X:
        e(f"s_cmp_eq_u32 s{sG}, {0 if 'P' in X else 1}"); lp = k.newlab(); e(f"s_cbranch_scc0 {lp}"); e("s_setprio 1"); k.label(lp)
    LL = [k.newlab("loop") for _ in range(2)]; LT = k.newlab("tail")
    for n in range(NF): rdK(n, 0)
    dma(1, 0, 0)
    for n in range(16):
        qk(n, S, '0')
        if n + NF < 16: rdK(n + NF, 0)
        for i in range(4 * n, 4 * n + 4): e(f"v_mov_b32 v{O+i}, 0")
    e(f"v_mov_b32 v{ls}, 0"); e(f"v_mov_b32 v{ls+1}, 0"); e(f"v_mov_b32 v{vm}, 0")
    e("s_barrier"); k.lq = []
    for n in range(NF): rdK(n, 1)
    dma(0, 0, 2); dma(1, 1, 1); mask(S, 0, False)
    for i, _ in rmax(S): e(i)
    e(f"v_max_f32 v{vmx}, {fh(-1e30)}, v{vmx}"); shift(S); k.stamp()
    DG = int(os.environ.get('DG', '1')); BG = int(os.environ.get('BG', '10'))
    for par in range(2):
        Sc, Sn = S + 32 * par, S + 32 * (1 - par)
        k.label(LL[par]); k.lq = list(range(NF)); st()
        if par == 0: e(f"s_cmp_eq_u32 s{sJ}, 16"); e(f"s_cbranch_scc1 {LT}")
        items = smx(Sc) + [("MASK", 0)] + rmax(Sn); tot = sum(c for _, c in items); done = 0; kq = list(range(NF))
        for gap in range(32):
            n = gap % 16
            if n == BG:
                st(); e("s_waitcnt vmcnt(8) lgkmcnt(0)"); l = k.newlab(); e(f"s_cmp_lt_u32 s{sJ}, 14"); e(f"s_cbranch_scc1 {l}"); e("s_waitcnt vmcnt(0)"); k.label(l)
                e("s_barrier"); k.lq = []; kq = list(range(NF)); st()
            if gap < 16:
                qk(n, Sn, R(NM, 16))
                if n + NF < 16: rdK(n + NF, 1 - par)
                elif n >= BG:
                    for _ in range(2):
                        if kq and kq[0] + NF <= n: rdV(kq.pop(0), par)
                if n == BG + DG and 'd' not in X: dma(0, 1 - par, 3)
            else:
                pv(n)
                if n + NF < 16: rdV(n + NF, par)
                elif n >= BG:
                    for _ in range(2):
                        if kq and kq[0] + NF <= n: rdK(kq.pop(0), par)
                if n == BG + DG and 'd' not in X: dma(1, par, 2)
                if n == BG + 4 and par == 1 and "f" not in X:
                    l = k.newlab(); e(f"s_cmp_eq_u32 s{sJ}, 7"); e(f"s_cbranch_scc0 {l}"); e(f"s_mov_b32 s{sT}, 0x200000")
                    for p, so in [(p, '0') for p in sPF] + [(sPF[0], f"s{sT}")]: e(f"buffer_load_dwordx2 {R(ml,2)}, v{vPF}, {S4(p)}, {so} offen")
                    k.label(l)
            while items and done < tot * (gap + 1) / 31.0:
                i, c = items.pop(0); done += c
                if i == "MASK": assert gap >= 18; mask(Sn, 1, True)
                else: e(i)
        assert not kq and not items
        lr, lsw = k.newlab(), k.newlab(); e(f"v_cmp_lt_f32 vcc, {fh(8.0)}, v{vmx}"); e(f"s_add_u32 s{sJ}, s{sJ}, 1")
        if par: e(f"s_cmp_eq_u32 s{sJ}, s{sNB}"); e(f"s_cbranch_scc1 {lsw}")
        else: e("s_nop 0")
        e(f"s_cbranch_vccz {LL[0] if par else lr}")
        e(f"v_max_f32 v{vmx}, 0, v{vmx}"); e(f"v_sub_f32 v{al}, 0, v{vmx}"); e(f"v_exp_f32 v{al}, v{al}"); shift(Sn)
        for r in [ls, ls + 1] + list(range(O, O + 64)): e(f"v_mul_f32 v{r}, v{r}, v{al}")
        if par:
            e(f"s_branch {LL[0]}"); k.label(lsw)
            e(f"v_add_f32 v{al}, v{ls}, v{ls+1}"); e(f"v_mov_b32 v{vt}, v{al}"); e(f"v_mov_b32 v{vm}, 0"); e(f"v_max_f32 v{vmx}, {fh(-1e30)}, v{vmx}")
            e(f"v_permlane32_swap_b32 v{vt}, v{al}"); shift(Sn); e(f"v_add_f32 v{al}, v{al}, v{vt}"); e(f"v_rcp_f32 v{al}, v{al}")
            e(f"v_mov_b32 v{ls}, 0"); e(f"v_mov_b32 v{ls+1}, 0"); e(f"s_lshl_b32 s{sT}, s{sI2}, 20"); e(f"s_add_u32 s{sT}, s{sT}, s{sB0}")
            for q in range(8):
                for i in range(8 * q, 8 * q + 8): e(f"v_mul_f32 v{O+i}, v{O+i}, v{al}")
                for i in range(4): e(f"v_cvt_pk_bf16_f32 v{Sc+4*q+i}, v{O+8*q+2*i}, v{O+8*q+2*i+1}")
                e(f"buffer_store_dwordx4 {R(Sc+4*q,4)}, v{vSt}, {S4(sCX)}, s{sT} offen offset:{32*q}")
            for i in range(64): e(f"v_mov_b32 v{O+i}, 0")
            e(f"s_branch {LL[0]}")
        else:
            k.label(lr); e(f"s_add_u32 s{sT}, s{sJ}, 1"); e(f"s_cmp_eq_u32 s{sT}, s{sNB}"); e(f"s_cbranch_scc0 {LL[1]}")
            for i in range(16): e(f"v_mov_b32 v{NM+i}, 0")
            e(f"s_lshl_b32 s{sDg}, s{sI}, 1"); e("s_nop 0")
    k.label(LT); k.lq = list(range(NF)); items = smx(S); k.stamp()
    for n in range(NF): rdV(n, 0)
    for i, _ in items[:20]: e(i)
    for n in range(16):
        pv(n)
        if n + NF < 16: rdV(n + NF, 0)
        for i, _ in items[20 + 5 * n:25 + 5 * n]: e(i)
    k.lq = []; k.stamp()
    t0, t1 = NM, NM + 1
    e(f"v_add_f32 v{ml+1}, v{ls}, v{ls+1}"); e(f"v_mov_b32 v{vt}, v{ml+1}"); e(f"v_mov_b32 v{ml}, v{vm}"); e("s_nop 0")
    e(f"v_permlane32_swap_b32 v{vt}, v{ml+1}"); e("s_nop 1"); e(f"v_add_f32 v{ml+1}, v{ml+1}, v{vt}")
    e(f"s_lshl_b32 s{sT}, s{sw}, 13"); e(f"s_add_u32 s{sT}, s{sT}, 98304"); e(f"v_lshlrev_b32 v{t0}, 4, v{vl}"); e(f"v_add_u32 v{t0}, s{sT}, v{t0}")
    e(f"s_lshl_b32 s{sT}, s{sw}, 9"); e(f"s_add_u32 s{sT}, s{sT}, 32768"); e(f"v_lshlrev_b32 v{t1}, 3, v{vl}"); e(f"v_add_u32 v{t1}, s{sT}, v{t1}")
    e(f"ds_write_b64 v{t1}, {R(ml,2)}")
    lg, ld = k.newlab(), k.newlab(); e(f"s_cmp_eq_u32 s{sG}, 0"); e(f"s_cbranch_scc1 {lg}")
    for i in range(8): e(f"ds_write_b128 v{t0}, {R(O+4*i,4)} offset:{1024*i}")
    e("s_nop 1")
    for i in range(32): e(f"v_mov_b32 v{O+i}, v{O+32+i}")
    e(f"s_branch {ld}"); k.label(lg)
    for i in range(8): e(f"ds_write_b128 v{t0}, {R(O+32+4*i,4)} offset:{1024*i}")
    k.label(ld)
    e(f"v_xor_b32 v{t0}, 0x38000, v{t0}"); e(f"v_xor_b32 v{t1}, 0x800, v{t1}"); e("s_waitcnt lgkmcnt(0)"); e("s_barrier")
    e(f"ds_read_b64 {R(ls,2)}, v{t1}")
    for i in range(8): e(f"ds_read_b128 {R(S+4*i,4)}, v{t0} offset:{1024*i}")
    e("s_waitcnt lgkmcnt(8)")
    e(f"v_max_f32 v{vmx}, v{ml}, v{ls}"); e(f"v_sub_f32 v{al}, v{ml}, v{vmx}"); e(f"v_sub_f32 v{nm}, v{ls}, v{vmx}")
    e(f"v_exp_f32 v{al}, v{al}"); e(f"v_exp_f32 v{nm}, v{nm}"); e("s_nop 0")
    e(f"v_mul_f32 v{vt}, v{al}, v{ml+1}"); e(f"v_fmac_f32 v{vt}, v{nm}, v{ls+1}"); e(f"v_rcp_f32 v{vt}, v{vt}"); e("s_nop 0")
    e(f"v_mul_f32 v{al}, v{al}, v{vt}"); e(f"v_mul_f32 v{nm}, v{nm}, v{vt}"); e(f"v_mov_b32 v{al+1}, v{al}"); e(f"v_mov_b32 v{nm+1}, v{nm}")
    e(f"s_lshl_b32 s{sT}, s{sI}, 20"); e(f"s_add_u32 s{sT}, s{sT}, s{sB0}"); e(f"s_lshl_b32 s{sJ}, s{sG}, 7"); e(f"s_add_u32 s{sT}, s{sT}, s{sJ}")
    e("s_waitcnt lgkmcnt(0)")
    for q in range(4):
        for i in range(8 * q, 8 * q + 8, 2):
            e(f"v_pk_mul_f32 {R(O+i,2)}, {R(O+i,2)}, {R(al,2)}"); e(f"v_pk_fma_f32 {R(O+i,2)}, {R(S+i,2)}, {R(nm,2)}, {R(O+i,2)}")
            e(f"v_cvt_pk_bf16_f32 v{P+i//2}, v{O+i}, v{O+i+1}")
        if "c" not in X: e(f"buffer_store_dwordx4 {R(P+4*q,4)}, v{vSt}, {S4(sCX)}, s{sT} offen offset:{32*q}")
    k.stamp()
    k.stamp_end(sw); e("s_endpgm"); return k, "grid=(256,1,1) block=(512,1,1) lds=163840"
```

```python
import os
SFDEF = 'kvopln:sc1'
class K:
    def __init__(self, name):
        self.name = name; self.L = []; self.vn = 1; self.sn = 4; self.lq = []; self.lab = 0; self.vmax = 1
    def e(self, s):
        if s.startswith("buffer_store_dwordx4"):
            for it in os.environ.get('SF', SFDEF).split(','):
                if it and self.name[:2] in it.split(':')[0]: s += " " + it.split(':')[1].replace('+', ' ')
        self.L.append("    " + s)
    def c(self, s): self.L.append("    ; " + s)
    def label(self, l): self.L.append(l + ":")
    def newlab(self, p="L"):
        self.lab += 1; return f"{self.name}_{p}{self.lab}"
    def v(self, n=1, al=1):
        self.vn = (self.vn + al - 1) // al * al; r = self.vn; self.vn += n
        self.vmax = max(self.vmax, self.vn); assert self.vn <= 256, "vgpr overflow"; return r
    def s(self, n=1, al=1):
        self.sn = (self.sn + al - 1) // al * al; r = self.sn; self.sn += n; assert self.sn <= 100; return r
    def lds(self, ins, tag=None): self.e(ins); self.lq.append(tag)
    def need(self, tags):
        idx = -1
        for i, t in enumerate(self.lq):
            if t in tags: idx = i
        if idx < 0: return
        n = min(len(self.lq) - 1 - idx, 15)
        self.e(f"s_waitcnt lgkmcnt({n})"); self.lq = self.lq[len(self.lq) - n:] if n else []
    def lgkm0(self): self.e("s_waitcnt lgkmcnt(0)"); self.lq = []
    def stamp(self):
        if self.name[:2] != os.environ.get('ST'): return
        if not hasattr(self, 'stv'): self.stv = 255; self.vmax = 256; self.sts = 96; self.sti = 0; self.e("v_mov_b32 v255, 0")
        self.e("s_memtime s[96:97]"); self.lgkm0(); self.e(f"v_writelane_b32 v255, s96, {self.sti % 64}"); self.sti += 1
    def stamp_end(self, sw):
        if not hasattr(self, 'stv'): return
        self.e("s_waitcnt vmcnt(0)"); self.stamp(); l = self.newlab()
        self.e(f"s_lshl_b32 s96, s{sw}, 12"); self.e("s_add_u32 s96, s96, s2"); self.e(f"s_cmp_eq_u32 s96, {os.environ.get('STW','77')}"); self.e(f"s_cbranch_scc0 {l}")
        self.e("s_load_dwordx2 s[92:93], s[0:1], 104"); self.e("s_waitcnt lgkmcnt(0)"); self.e("s_and_b32 s93, s93, 0xffff"); self.e("s_mov_b32 s94, 256"); self.e("s_mov_b32 s95, 0x20000")
        self.e("v_lshlrev_b32 v254, 2, v1"); self.e("buffer_store_dword v255, v254, s[92:95], 0 offen"); self.label(l)
    def srd(self, argoff, nbytes, add=0):
        r = self.s(4, 4); self.e(f"s_load_dwordx2 s[{r}:{r+1}], s[0:1], {argoff}")
        self.pend = getattr(self, 'pend', []) + [(r, nbytes, add)]; return r
    def srd_fin(self):
        self.e("s_waitcnt lgkmcnt(0)")
        for r, nb, add in self.pend:
            if add:
                self.e(f"s_add_u32 s{r}, s{r}, {add:#x}"); self.e(f"s_addc_u32 s{r+1}, s{r+1}, 0")
            self.e(f"s_and_b32 s{r+1}, s{r+1}, 0xffff")
            self.e(f"s_mov_b32 s{r+2}, {nb:#x}"); self.e(f"s_mov_b32 s{r+3}, 0x20000")
        self.pend = []
    def text(self, sgpr=100):
        nv = (self.vmax + 7) // 8 * 8
        h = [f".globl {self.name}", ".p2align 8", f".type {self.name},@function", f"{self.name}:"]
        d = [f".amdhsa_kernel {self.name}", f"  .amdhsa_next_free_vgpr {nv}", f"  .amdhsa_next_free_sgpr {sgpr}",
             f"  .amdhsa_accum_offset {nv}", "  .amdhsa_group_segment_fixed_size 0", "  .amdhsa_kernarg_size 120",
             "  .amdhsa_user_sgpr_count 2", "  .amdhsa_user_sgpr_kernarg_segment_ptr 1",
             "  .amdhsa_system_sgpr_workgroup_id_x 1", ".end_amdhsa_kernel"]
        return "\n".join(h + self.L), "\n".join([".p2align 6"] + d)

def R(b, n): return f"v[{b}:{b+n-1}]"
def S4(b): return f"s[{b}:{b+3}]"

def lane_setup(k):
    vl = k.v(); sw = k.s()
    k.e(f"v_lshrrev_b32 v{vl}, 6, v0"); k.e("s_nop 0"); k.e(f"v_readfirstlane_b32 s{sw}, v{vl}")
    k.e(f"v_and_b32 v{vl}, 63, v0")
    return vl, sw

class Gemm:
    def __init__(g, k, vl, sw, NW, WGM, WGN, WM, WN, KT, NS, G, BW, lda, ldb, perm, Tmul, Tadd, base=0):
        g.__dict__.update(locals()); del g.__dict__['g']
        g.BM = WGM * WM; g.BN = WGN * WN; g.nM = WM // 32; g.nN = WN // 32
        g.nB = g.BN // BW; g.ASZ = g.BM * 128; g.SUB = 64 * BW * 2; g.STG = g.ASZ + g.nB * g.SUB
        g.LA = g.BM // 8 // NW; g.CPR = BW // 8; g.LB = g.nB * g.CPR // NW; g.L = g.LA + g.LB
        g.nwin = (base + NS * g.STG + 65535) // 65536
    def setup(g, a_extra=None, b_extra=None, frbase=None):
        k, vl, sw = g.k, g.vl, g.sw
        t0, t1, t2 = k.v(), k.v(), k.v(); g.tmp = (t0, t1, t2)
        g.sW = k.s(); k.e(f"s_lshl_b32 s{g.sW}, s{sw}, 10")
        g.swm, g.swn = k.s(), k.s(); st = k.s(); st2 = k.s(); g.st = st
        lg = g.WGN.bit_length() - 1
        k.e(f"s_lshr_b32 s{g.swm}, s{sw}, {lg}"); k.e(f"s_and_b32 s{g.swn}, s{sw}, {g.WGN-1}")
        g.vAo = [k.v() for _ in range(g.LA)]
        k.e(f"s_lshl_b32 s{st}, s{sw}, 2")
        k.e(f"v_lshrrev_b32 v{t0}, 4, v{vl}"); k.e(f"v_add_u32 v{t0}, s{st}, v{t0}")
        k.e(f"v_xor_b32 v{t0}, v{t0}, v{vl}"); k.e(f"v_and_b32 v{t0}, 7, v{t0}"); k.e(f"v_lshlrev_b32 v{t0}, 4, v{t0}")
        k.e(f"s_lshl_b32 s{st}, s{sw}, 3")
        k.e(f"v_lshrrev_b32 v{t1}, 3, v{vl}"); k.e(f"v_add_u32 v{t1}, s{st}, v{t1}")
        k.e(f"s_mov_b32 s{st}, {g.lda}"); k.e(f"v_mul_lo_u32 v{t1}, v{t1}, s{st}")
        k.e(f"v_add_u32 v{g.vAo[0]}, v{t0}, v{t1}")
        for j in range(g.LA - 1, -1, -1):
            ex = a_extra(j) if a_extra else 8 * g.NW * j * g.lda
            if ex != 0 or j: k.e(f"v_add_u32 v{g.vAo[j]}, {ex}, v{g.vAo[0]}")
        RB = 64 // g.CPR; lc = g.CPR.bit_length() - 1
        g.vBo = [k.v() for _ in range(g.LB)]
        k.e(f"v_lshrrev_b32 v{t1}, {lc}, v{vl}")
        if g.BW == 128: k.e(f"v_lshlrev_b32 v{t0}, 2, v{t1}")
        else: k.e(f"v_lshlrev_b32 v{t0}, 1, v{t1}"); k.e(f"v_and_b32 v{t0}, 4, v{t0}")
        k.e(f"v_xor_b32 v{t0}, v{t0}, v{vl}"); k.e(f"v_and_b32 v{t0}, {g.CPR-1}, v{t0}"); k.e(f"v_lshlrev_b32 v{t0}, 4, v{t0}")
        k.e(f"s_mul_i32 s{st}, s{sw}, {RB}"); k.e(f"v_add_u32 v{t1}, s{st}, v{t1}")
        k.e(f"s_mov_b32 s{st}, {g.ldb}"); k.e(f"v_mul_lo_u32 v{t1}, v{t1}, s{st}")
        k.e(f"v_add_u32 v{g.vBo[0]}, v{t0}, v{t1}")
        g.bsub = []
        for j in range(g.LB - 1, -1, -1):
            sub = g.NW * j // g.CPR; io = g.NW * j % g.CPR; g.bsub.insert(0, sub)
            ex = RB * io * g.ldb + (b_extra(sub) if b_extra else sub * g.BW * 2)
            if ex != 0 or j: k.e(f"v_add_u32 v{g.vBo[j]}, {ex}, v{g.vBo[0]}")
        g.vA = [[k.v() for _ in range(4)] for _ in range(g.nwin)]
        k.e(f"v_lshrrev_b32 v{t0}, 5, v{vl}"); k.e(f"v_bfe_u32 v{t1}, v{vl}, 1, 3"); k.e(f"v_xor_b32 v{t0}, v{t0}, v{t1}")
        k.e(f"v_lshlrev_b32 v{t0}, 4, v{t0}"); k.e(f"v_and_b32 v{t1}, 31, v{vl}"); k.e(f"v_lshl_add_u32 v{t0}, v{t1}, 7, v{t0}")
        k.e(f"s_mul_i32 s{st}, s{g.swm}, {g.WM*128}"); k.e(f"v_add_u32 v{t0}, s{st}, v{t0}")
        for w in range(g.nwin):
            for s in range(4):
                k.e(f"v_xor_b32 v{g.vA[w][s]}, {s<<5}, v{t0}")
                if w: k.e(f"v_add_u32 v{g.vA[w][s]}, {w*65536}, v{g.vA[w][s]}")
        rb = g.BW * 2; tpb = g.BW // 32
        g.vB = [[k.v() for _ in range(g.nN)] for _ in range(g.nwin)]
        k.e(f"v_lshrrev_b32 v{t0}, 5, v{vl}"); k.e(f"v_lshlrev_b32 v{t0}, {2 if g.perm else 3}, v{t0}")
        k.e(f"v_bfe_u32 v{t1}, v{vl}, 2, 2"); k.e(f"v_add_u32 v{t0}, v{t0}, v{t1}")
        k.e(f"v_mul_u32_u24 v{t0}, {rb}, v{t0}")
        k.e(f"v_bfe_u32 v{t2}, v{vl}, 4, 1"); k.e(f"v_lshl_add_u32 v{t0}, v{t2}, 5, v{t0}")
        k.e(f"v_and_b32 v{t2}, 3, v{vl}"); k.e(f"v_lshl_add_u32 v{t0}, v{t2}, 3, v{t0}")
        if g.BW == 64: k.e(f"v_lshrrev_b32 v{t1}, 1, v{t1}")
        for ni in range(g.nN):
            k.e(f"s_mul_i32 s{st}, s{g.swn}, {g.Tmul}"); k.e(f"s_add_u32 s{st}, s{st}, {g.Tadd*ni}")
            k.e(f"s_and_b32 s{st2}, s{st}, {tpb-1}"); k.e(f"v_xor_b32 v{t2}, s{st2}, v{t1}")
            k.e(f"v_lshl_add_u32 v{t2}, v{t2}, 6, v{t0}")
            k.e(f"s_lshr_b32 s{st}, s{st}, {tpb.bit_length()-1}"); k.e(f"s_mul_i32 s{st}, s{st}, {g.SUB}")
            for w in range(g.nwin):
                k.e(f"v_add_u32 v{g.vB[w][ni]}, s{st}, v{t2}")
                if w: k.e(f"v_add_u32 v{g.vB[w][ni]}, {w*65536}, v{g.vB[w][ni]}")
        g.sKA, g.sKB, g.sR = k.s(), k.s(), k.s()
        k.e(f"s_lshr_b32 s{g.sR}, s2, 3")
        if not os.environ.get('ROT'): k.e(f"s_mov_b32 s{g.sR}, 0")
        if g.KT & (g.KT - 1) == 0: k.e(f"s_and_b32 s{g.sR}, s{g.sR}, {g.KT-1}")
        else: k.e(f"s_min_u32 s{g.sR}, s{g.sR}, {g.KT-1}")
        sv = k.vn
        if frbase: k.vn = frbase
        g.fr = [[[k.v(4, 2) for _ in range(g.nM + g.nN)] for _ in range(g.G)] for _ in range(2)]
        if frbase: k.vn = sv
    def loads(g, kt, srdA, srdB, sA0, sB0):
        sb = g.base + (kt % g.NS) * g.STG; out = []
        for j in range(g.LA):
            f = [f"s_lshl_b32 s{g.sKA}, s{g.sR}, 7", f"s_add_u32 s{g.sKA}, s{g.sKA}, s{sA0}"] if j == 0 else []
            f += [f"s_add_u32 m0, s{g.sW}, {sb + g.NW*j*1024}", "s_nop 0",
                  f"buffer_load_dwordx4 v{g.vAo[j]}, {S4(srdA)}, s{g.sKA} offen lds"]
            out.append(f)
        for j in range(g.LB):
            f = [f"s_mul_i32 s{g.sKB}, s{g.sR}, {64*g.ldb}", f"s_add_u32 s{g.sKB}, s{g.sKB}, s{sB0}", f"s_add_u32 s{g.sR}, s{g.sR}, 1",
                 f"s_cmp_eq_u32 s{g.sR}, {g.KT}", f"s_cselect_b32 s{g.sR}, 0, s{g.sR}"] if j == 0 else []
            f += [f"s_add_u32 m0, s{g.sW}, {sb + g.ASZ + g.NW*j*1024}", "s_nop 0",
                  f"buffer_load_dwordx4 v{g.vBo[j]}, {S4(srdB[g.bsub[j]])}, s{g.sKB} offen lds"]
            out.append(f)
        return out
    def reads(g, kt, b):
        bi = (kt * (4 // g.G) + b) % 2; sb = g.base + (kt % g.NS) * g.STG; out = []
        order = []
        for i in range(max(g.nM, g.nN)):
            if i < g.nM: order.append(('a', i))
            if i < g.nN: order.append(('b', i))
        for gi in range(g.G):
            s = b * g.G + gi
            for ty, i in order:
                if ty == 'a':
                    off = sb + i * 4096; w = off // 65536
                    if (off + (g.WGM-1) * g.WM * 128 + 4096) > 65536 * (w + 1) + 65536: raise Exception
                    out.append((f"ds_read_b128 {R(g.fr[bi][gi][i],4)}, v{g.vA[w][s]} offset:{off - w*65536}", (bi, gi, i)))
                else:
                    for p in range(2):
                        off = sb + g.ASZ + (16 * s + p * (8 if g.perm else 4)) * g.BW * 2; w = off // 65536
                        out.append((f"ds_read_b64_tr_b16 {R(g.fr[bi][gi][g.nM+i]+2*p,2)}, v{g.vB[w][i]} offset:{off - w*65536}", (bi, gi, g.nM + i)))
        return out
    def run(g, acc, orient, srdA, srdB, sA0, sB0, tail=None, rpm=2, bg=1, fpm=1):
        k = g.k; nb = 4 // g.G; k.stamp()
        for kt in range(min(g.NS, g.KT)):
            for f in g.loads(kt, srdA, srdB, sA0, sB0):
                for i in f: k.e(i)
        k.stamp(); k.e(f"s_waitcnt vmcnt({(min(g.NS, g.KT)-bg)*g.L})"); k.e("s_barrier"); k.stamp()
        for ins, tag in g.reads(0, 0): k.lds(ins, tag)
        fill = []
        for kt in range(g.KT):
            for b in range(nb):
                bi = (kt * nb + b) % 2; rd = []
                if b < nb - 1: rd = g.reads(kt, b + 1)
                elif kt + 1 < g.KT and (kt + 1) % bg: rd = g.reads(kt + 1, 0)
                elif kt + 1 < g.KT:
                    for f in fill:
                        for i in f: k.e(i)
                    fill = []
                    k.lgkm0(); k.stamp()
                    k.e(f"s_waitcnt vmcnt({max(0, min(kt+g.NS-bg, g.KT-1)-(kt+bg))*g.L})"); k.e("s_barrier"); k.stamp()
                    rd = g.reads(kt + 1, 0)
                    if kt + g.NS < g.KT:
                        for u in range(bg): fill += g.loads(kt + g.NS - bg + 1 + u, srdA, srdB, sA0, sB0)
                    elif kt + 2 == g.KT and tail: fill = list(tail)
                    for ins, tag in rd: k.lds(ins, tag)
                    rd = []
                for gi in range(g.G):
                    for mi in range(g.nM):
                        for ni in range(g.nN):
                            k.need({(bi, gi, mi), (bi, gi, g.nM + ni)})
                            fa, fb = R(g.fr[bi][gi][mi], 4), R(g.fr[bi][gi][g.nM + ni], 4)
                            if orient == 'CT': fa, fb = fb, fa
                            first = (kt == 0 and b == 0 and gi == 0)
                            d = R(acc[mi][ni], 16)
                            k.e(f"v_mfma_f32_32x32x16_bf16 {d}, {fa}, {fb}, {'0' if first else d}")
                            for _ in range(rpm):
                                if rd: ins, tag = rd.pop(0); k.lds(ins, tag)
                            for _ in range(fpm):
                                if not rd and fill:
                                    for i in fill.pop(0): k.e(i)
                for ins, tag in rd: k.lds(ins, tag)
        for f in fill:
            for i in f: k.e(i)
        k.e("s_nop 15"); k.stamp()
```

```python
import sys, os
sys.path.insert(0, os.path.dirname(__file__))
from core import *
NAME = "adaLN_cond__compressed_kv_cla__glu_gated_bilinear__prompt"
WS = 112
O_MOD, O_H1, O_KI, O_VI, O_CTX, O_PART, O_X1, O_H2, O_HH = 0, 0x10000, 0x400000, 0x1400000, 0x2400000, 0x3400000, 0x4400000, 0x4600000, 0x4800000
if not os.environ.get('CHK'): O_PART, O_HH, O_X1, O_H2 = O_KI, O_CTX, O_VI, O_VI + 0x200000
MB2, MB16 = 0x200000, 0x1000000
LOG2E = 1.4426950408889634
import struct
def fh(x): return "0x%08x" % struct.unpack("<I", struct.pack("<f", x))[0]

def guard(k, n):
    k.stamp()
    k.e(f"s_cmp_lt_u32 s2, {n}"); l = k.newlab(); k.e(f"s_cbranch_scc1 {l}"); k.e("s_endpgm"); k.label(l)
def wave_sum(k, v, t):
    for r in (8, 4, 2, 1):
        k.e("s_nop 1"); k.e(f"v_add_f32_dpp v{v}, v{v}, v{v} row_ror:{r} row_mask:0xf bank_mask:0xf")
    for p in (16, 32):
        k.e(f"v_mov_b32 v{t}, v{v}"); k.e("s_nop 1"); k.e(f"v_permlane{p}_swap_b32 v{t}, v{v}"); k.e("s_nop 1"); k.e(f"v_add_f32 v{v}, v{v}, v{t}")
def unpack8(k, src, dst):
    for i in range(4):
        k.e(f"v_lshlrev_b32 v{dst+2*i}, 16, v{src+i}"); k.e(f"v_and_b32 v{dst+2*i+1}, 0xffff0000, v{src+i}")
def pack(k, src, dst, n):
    for i in range(n): k.e(f"v_cvt_pk_bf16_f32 v{dst+i}, v{src+2*i}, v{src+2*i+1}")
def layernorm(k, x, sh, sc, t, out):
    a, b = t, t + 1
    k.e(f"v_add_f32 v{a}, v{x}, v{x+1}")
    for i in range(2, 8): k.e(f"v_add_f32 v{a}, v{a}, v{x+i}")
    wave_sum(k, a, b); k.e(f"v_mul_f32 v{a}, {fh(1/512)}, v{a}")
    for i in range(8): k.e(f"v_sub_f32 v{x+i}, v{x+i}, v{a}")
    k.e(f"v_mul_f32 v{a}, v{x}, v{x}")
    for i in range(1, 8): k.e(f"v_fmac_f32 v{a}, v{x+i}, v{x+i}")
    wave_sum(k, a, b); k.e(f"v_mov_b32 v{b}, {fh(1e-5)}"); k.e(f"v_fmac_f32 v{b}, {fh(1/512)}, v{a}")
    k.e(f"v_rsq_f32 v{a}, v{b}"); k.e("s_nop 0")
    for i in range(8):
        k.e(f"v_mul_f32 v{x+i}, v{x+i}, v{a}"); k.e(f"v_add_f32 v{sc+i}, 1.0, v{sc+i}"); k.e(f"v_fma_f32 v{x+i}, v{x+i}, v{sc+i}, v{sh+i}")
    pack(k, x, out, 4)

def k_mod():
    k = K("mod_kernel"); guard(k, 256)
    lm = k.newlab(); k.e("s_cmp_lt_u32 s2, 96"); k.e(f"s_cbranch_scc1 {lm}")
    pf = [(k.srd(8, MB2), 4), (k.srd(24, 0x400000), 7), (k.srd(32, 0x400000), 7), (k.srd(0, MB2), 4)]; k.srd_fin()
    k.e("s_sub_u32 s3, s2, 96"); k.e("s_lshl_b32 s3, s3, 12"); k.e("v_lshlrev_b32 v1, 4, v0"); k.e("v_add_u32 v1, s3, v1")
    for i in range(7):
        k.e(f"s_mov_b32 s3, {i*655360}")
        for r, n in pf:
            if i < n and 'f' not in os.environ.get('X',''): k.e(f"buffer_load_dwordx4 v[4:7], v1, {S4(r)}, s3 offen")
    k.e("s_waitcnt vmcnt(0)"); k.e("s_endpgm"); k.label(lm)
    sC = k.srd(80, 1024); sW = k.srd(88, 512 * 6144); sM = k.srd(WS, 12288, O_MOD); k.srd_fin()
    vkr, vo, vt = k.v(), k.v(), k.v(); cv = k.v(8); w = k.v(32, 4); acc = k.v(8, 4); u = k.v(2); s0 = k.s()
    k.e(f"v_lshrrev_b32 v{vkr}, 2, v0"); k.e(f"v_lshlrev_b32 v{vt}, 1, v{vkr}")
    for i in range(8): k.e(f"buffer_load_ushort v{cv+i}, v{vt}, {S4(sC)}, 0 offen offset:{128*i}")
    k.e(f"v_mul_u32_u24 v{vo}, 6144, v{vkr}"); k.e(f"v_and_b32 v{vt}, 3, v0"); k.e(f"v_lshl_add_u32 v{vo}, v{vt}, 4, v{vo}")
    k.e(f"s_lshl_b32 s{s0}, s2, 6")
    for i in range(8):
        k.e(f"buffer_load_dwordx4 {R(w+4*i,4)}, v{vo}, {S4(sW)}, s{s0} offen"); k.e(f"s_add_u32 s{s0}, s{s0}, {64*6144}")
    k.e("s_waitcnt vmcnt(8)")
    for i in range(8):
        c = cv + i
        k.e(f"v_lshlrev_b32 v{c}, 16, v{c}"); k.e(f"v_mul_f32 v{u}, {fh(-LOG2E)}, v{c}"); k.e(f"v_exp_f32 v{u}, v{u}"); k.e("s_nop 0")
        k.e(f"v_add_f32 v{u}, 1.0, v{u}"); k.e(f"v_rcp_f32 v{u}, v{u}"); k.e("s_nop 0"); k.e(f"v_mul_f32 v{c}, v{c}, v{u}")
        k.e(f"v_cvt_pk_bf16_f32 v{c}, v{c}, v{c}"); k.e(f"v_and_b32 v{c}, 0xffff0000, v{c}")
    for j in range(8): k.e(f"v_mov_b32 v{acc+j}, 0")
    for i in range(8):
        k.e(f"s_waitcnt vmcnt({7-i})")
        for j in range(4):
            k.e(f"v_lshlrev_b32 v{u}, 16, v{w+4*i+j}"); k.e(f"v_and_b32 v{u+1}, 0xffff0000, v{w+4*i+j}")
            k.e(f"v_fmac_f32 v{acc+2*j}, v{u}, v{cv+i}"); k.e(f"v_fmac_f32 v{acc+2*j+1}, v{u+1}, v{cv+i}")
    k.e(f"v_lshlrev_b32 v{vt}, 5, v0")
    k.e(f"ds_write_b128 v{vt}, {R(acc,4)}"); k.e(f"ds_write_b128 v{vt}, {R(acc+4,4)} offset:16")
    k.e("s_waitcnt lgkmcnt(0)"); k.e("s_barrier")
    k.e(f"v_lshrrev_b32 v{vt}, 5, v0"); k.e(f"v_lshlrev_b32 v{vt}, 10, v{vt}"); k.e(f"v_and_b32 v{vo}, 31, v0"); k.e(f"v_lshlrev_b32 v{vo}, 2, v{vo}")
    k.e(f"v_add_u32 v{vt}, v{vt}, v{vo}")
    for i in range(8): k.e(f"ds_read_b32 v{acc+i}, v{vt} offset:{128*i}")
    k.e("s_waitcnt lgkmcnt(0)")
    for i in range(1, 8): k.e(f"v_add_f32 v{acc}, v{acc}, v{acc+i}")
    k.e(f"v_lshlrev_b32 v{vt}, 2, v0"); k.e(f"ds_write_b32 v{vt}, v{acc} offset:8192")
    k.e("s_waitcnt lgkmcnt(0)"); k.e("s_barrier")
    for i in range(8): k.e(f"ds_read_b32 v{acc+i}, v{vo} offset:{8192+128*i}")
    k.e("s_waitcnt lgkmcnt(0)")
    for i in range(1, 8): k.e(f"v_add_f32 v{acc}, v{acc}, v{acc+i}")
    k.e(f"v_cvt_pk_bf16_f32 v{acc}, v{acc}, v{acc}"); k.e(f"v_and_b32 v{acc}, 0xffff0000, v{acc}")
    k.e(f"s_lshl_b32 s{s0}, s2, 7")
    k.e(f"buffer_store_dword v{acc}, v{vo}, {S4(sM)}, s{s0} offen")
    k.e("s_endpgm"); return k, "grid=(256,1,1) block=(256,1,1) lds=9216"

def k_kv():
    k = K("kv_kernel"); guard(k, 256)
    sX = k.srd(0, MB2); sA = k.srd(8, MB2); sUK = k.srd(24, 0x400000); sUV = k.srd(32, 0x400000)
    sM = k.srd(WS, 12288, O_MOD); sH = k.srd(WS, MB2, O_H1); sKI = k.srd(WS, MB16, O_KI); sVI = k.srd(WS, MB16, O_VI); sQ = k.srd(16, 0x400000)
    vl, sw = lane_setup(k); k.srd_fin()
    pf = k.v(4, 4); vPF = k.v(); sPF = k.s(); k.e(f"s_mov_b32 s{sPF}, 0x200000")
    k.e(f"s_lshl_b32 s3, s2, 13"); k.e(f"v_lshlrev_b32 v{vPF}, 4, v0"); k.e(f"v_add_u32 v{vPF}, s3, v{vPF}")
    tail = [[f"buffer_load_dwordx4 {R(pf,4)}, v{vPF}, {S4(sQ)}, {o} offen"] for o in ('0', f's{sPF}')]
    xr = k.v(4, 4); sh = k.v(8, 4); sc = k.v(8, 4); v16, v32 = k.v(), k.v(); sRow = k.s()
    k.e(f"v_lshlrev_b32 v{v16}, 4, v{vl}"); k.e(f"v_lshlrev_b32 v{v32}, 5, v{vl}")
    k.e(f"s_lshl_b32 s{sRow}, s2, 3"); k.e(f"s_add_u32 s{sRow}, s{sRow}, s{sw}"); k.e(f"s_lshl_b32 s{sRow}, s{sRow}, 10")
    k.e(f"buffer_load_dwordx4 {R(xr,4)}, v{v16}, {S4(sX)}, s{sRow} offen")
    for i, d in enumerate((sh, sc)):
        for h in range(2): k.e(f"buffer_load_dwordx4 {R(d+4*h,4)}, v{v32}, {S4(sM)}, 0 offen offset:{2048*i+16*h}")
    g = Gemm(k, vl, sw, 8, 2, 4, 128, 64, 2 if 'k' in os.environ.get('X','') else 8, 2, 1, 128, 1024, 8192, False, 2, 1); g.setup()
    acc = [[k.v(16, 4) for _ in range(2)] for _ in range(4)]
    sMb, sNb, sA0, sB0, sO, sT = (k.s() for _ in range(6))
    k.e(f"s_bfe_u32 s{sMb}, s2, 0x30003"); k.e(f"s_and_b32 s{sNb}, s2, 7"); k.e(f"s_lshl_b32 s{sNb}, s{sNb}, 1")
    k.e(f"s_bfe_u32 s{sT}, s2, 0x10006"); k.e(f"s_add_u32 s{sNb}, s{sNb}, s{sT}")
    k.e(f"s_lshl_b32 s{sA0}, s{sMb}, 18"); k.e(f"s_lshl_b32 s{sB0}, s{sNb}, 9")
    k.e(f"s_lshr_b32 s{sT}, s{g.swn}, 1"); k.e(f"s_lshl_b32 s{sO}, s{sNb}, 1"); k.e(f"s_add_u32 s{sO}, s{sO}, s{sT}"); k.e(f"s_lshl_b32 s{sO}, s{sO}, 19")
    k.e(f"s_lshl_b32 s{sT}, s{sMb}, 16"); k.e(f"s_add_u32 s{sO}, s{sO}, s{sT}"); k.e(f"s_lshl_b32 s{sT}, s{g.swm}, 15"); k.e(f"s_add_u32 s{sO}, s{sO}, s{sT}")
    lV, lE = k.newlab(), k.newlab(); t0, t1, t2 = g.tmp; va = g.vA[0]; pk = g.fr[0][0]
    k.e("s_bitcmp1_b32 s2, 7"); k.e(f"s_cbranch_scc1 {lV}")
    for isV in (0, 1):
        if isV: k.label(lV); k.lq = []; k.sti = 1
        g.run(acc, 'C' if isV else 'CT', sA, [sUV if isV else sUK] * 2, sA0, sB0, tail=None if 'f' in os.environ.get('X','') else tail)
        k.e(f"v_lshrrev_b32 v{t0}, 5, v{vl}"); k.e(f"v_and_b32 v{t1}, 31, v{vl}"); k.e(f"s_and_b32 s{sT}, s{g.swn}, 1")
        k.e(f"s_lshl_b32 s{sA0}, s{sw}, 13")
        if not isV: k.e(f"v_and_b32 v{t2}, 7, v{vl}")
        else:
            k.e(f"s_lshl_b32 s{sT}, s{sT}, 13"); k.e(f"s_add_u32 s{sO}, s{sO}, s{sT}"); k.e(f"v_bfe_u32 v{t2}, v{vl}, 1, 3")
        k.e(f"v_xor_b32 v{t0}, v{t0}, v{t2}"); k.e(f"v_lshlrev_b32 v{t0}, 4, v{t0}"); k.e(f"v_lshl_add_u32 v{t0}, v{t1}, 7, v{t0}"); k.e(f"v_add_u32 v{t0}, s{sA0}, v{t0}")
        for i in range(4): k.e(f"v_xor_b32 v{va[i]}, {i<<5}, v{t0}")
        k.e(f"v_add_u32 v{t0}, s{sA0}, v{v16}")
        if not isV:
            k.e(f"s_lshl_b32 s{sT}, s{sT}, 7"); k.e(f"v_lshrrev_b32 v{t1}, 3, v{vl}"); k.e(f"v_lshlrev_b32 v{t1}, 8, v{t1}"); k.e(f"v_lshl_add_u32 v{t1}, v{t2}, 4, v{t1}")
            k.e(f"v_add_u32 v{t1}, s{sT}, v{t1}"); k.e(f"v_xor_b32 v{t2}, 0x80, v{t1}")
        def blk(j, i): return (acc[2 * (j // 2) + i // 2][j % 2] if isV else acc[j][i // 2]) + 8 * (i % 2)
        def stores(j):
            k.e(f"s_add_u32 s{sT}, s{sO}, {(j // 2) * 16384 + (j % 2) * 4096 if isV else j * 8192}"); k.e(f"s_add_u32 s{sB0}, s{sT}, 4096")
            for i in range(4):
                if isV: k.e(f"buffer_store_dwordx4 {R(blk(j,i)+4,4)}, v{v16}, {S4(sVI)}, s{sT} offen offset:{1024*i}")
                else: k.e(f"buffer_store_dwordx4 {R(blk(j,i)+4,4)}, v{t2 if i%2 else t1}, {S4(sKI)}, s{sB0 if i//2 else sT} offen offset:{2048*(i%2)}")
        for j in range(4):
            for i in range(4):
                pack(k, blk(j, i), blk(j, i), 4); k.e(f"ds_write_b128 v{va[i]}, {R(blk(j,i),4)} offset:{4096*(j%2)}")
            for i in range(4): k.e(f"ds_read_b128 {R(blk(j,i)+4,4)}, v{t0} offset:{4096*(j%2)+1024*i}")
            if j: k.e("s_waitcnt lgkmcnt(8)"); stores(j - 1)
        k.e("s_waitcnt lgkmcnt(0)"); stores(3)
        if not isV: k.e(f"s_branch {lE}")
    k.label(lE)
    x = acc[0][0]; unpack8(k, xr, x); layernorm(k, x, sh, sc, x + 8, x + 12)
    k.e(f"buffer_store_dwordx4 {R(x+12,4)}, v{v16}, {S4(sH)}, s{sRow} offen")
    k.stamp(); k.stamp_end(sw); k.e("s_endpgm"); return k, "grid=(256,1,1) block=(512,1,1) lds=131072"

def k_op():
    k = K("op_kernel"); guard(k, 256)
    sA = k.srd(WS, MB16, O_CTX); sB = k.srd(40, 0x400000); sP = k.srd(WS, 0x800000, O_PART)
    vl, sw = lane_setup(k); k.srd_fin()
    g = Gemm(k, vl, sw, 4, 2, 2, 64, 64, 16, int(os.environ.get('OPNS','3')), 2, 128, 8192, 1024, True, 2, 1); g.setup()
    acc = [[k.v(16, 4) for _ in range(2)] for _ in range(2)]
    sKs, sMb, sNb, sA0, sB0, sO, sT = (k.s() for _ in range(7))
    k.e(f"s_bfe_u32 s{sKs}, s2, 0x20001"); k.e(f"s_and_b32 s{sMb}, s2, 1"); k.e(f"s_lshl_b32 s{sMb}, s{sMb}, 3")
    k.e(f"s_bfe_u32 s{sT}, s2, 0x30003"); k.e(f"s_add_u32 s{sMb}, s{sMb}, s{sT}"); k.e(f"s_lshr_b32 s{sNb}, s2, 6")
    k.e(f"s_lshl_b32 s{sA0}, s{sMb}, 20"); k.e(f"s_lshl_b32 s{sT}, s{sKs}, 11"); k.e(f"s_add_u32 s{sA0}, s{sA0}, s{sT}")
    k.e(f"s_lshl_b32 s{sB0}, s{sKs}, 20"); k.e(f"s_lshl_b32 s{sT}, s{sNb}, 8"); k.e(f"s_add_u32 s{sB0}, s{sB0}, s{sT}")
    obg = int(os.environ.get('OBG', '1')); assert g.KT % obg == 0 and g.NS % obg == 0
    g.run(acc, 'CT', sA, [sB], sA0, sB0, bg=obg, fpm=obg)
    t0, t1, t2 = g.tmp
    k.e(f"s_lshl_b32 s{sO}, s{sKs}, 21"); k.e(f"s_lshl_b32 s{sT}, s{sMb}, 17"); k.e(f"s_add_u32 s{sO}, s{sO}, s{sT}")
    k.e(f"s_lshl_b32 s{sT}, s{g.swm}, 16"); k.e(f"s_add_u32 s{sO}, s{sO}, s{sT}"); k.e(f"s_lshl_b32 s{sT}, s{sNb}, 8"); k.e(f"s_add_u32 s{sO}, s{sO}, s{sT}")
    k.e(f"s_lshl_b32 s{sT}, s{g.swn}, 7"); k.e(f"s_add_u32 s{sO}, s{sO}, s{sT}"); k.e(f"s_add_u32 s{sT}, s{sO}, 32768")
    assert g.NS == 3 and obg == 1
    va = g.vA[0]; k.e(f"s_lshl_b32 s{sA0}, s{sw}, 13"); k.e(f"s_add_u32 s{sA0}, s{sA0}, {g.STG}")
    k.e(f"v_lshrrev_b32 v{t0}, 5, v{vl}"); k.e(f"v_and_b32 v{t1}, 31, v{vl}"); k.e(f"v_and_b32 v{t2}, 7, v{vl}")
    k.e(f"v_xor_b32 v{t0}, v{t0}, v{t2}"); k.e(f"v_lshlrev_b32 v{t0}, 4, v{t0}"); k.e(f"v_lshl_add_u32 v{t0}, v{t1}, 7, v{t0}"); k.e(f"v_add_u32 v{t0}, s{sA0}, v{t0}")
    for i in range(4): k.e(f"v_xor_b32 v{va[i]}, {i<<5}, v{t0}")
    k.e(f"v_lshrrev_b32 v{t1}, 3, v{vl}"); k.e(f"v_xor_b32 v{t0}, v{t1}, v{t2}"); k.e(f"v_lshlrev_b32 v{t0}, 4, v{t0}"); k.e(f"v_lshl_add_u32 v{t0}, v{t1}, 7, v{t0}"); k.e(f"v_add_u32 v{t0}, s{sA0}, v{t0}")
    k.e(f"v_lshlrev_b32 v{t1}, 10, v{t1}"); k.e(f"v_lshl_add_u32 v{t1}, v{t2}, 4, v{t1}")
    blk = lambda j, i: acc[j][i // 2] + 8 * (i % 2)
    for mi in range(2):
        for i in range(4): pack(k, blk(mi, i), blk(mi, i), 4)
        k.e("s_nop 1")
        for i in range(4):
            for j in range(2): k.e(f"v_permlane32_swap_b32 v{blk(mi,i)+j}, v{blk(mi,i)+2+j}")
        k.e("s_nop 1")
        for i in range(4): k.e(f"ds_write_b128 v{va[i]}, {R(blk(mi,i),4)} offset:{4096*mi}")
        for i in range(4): k.e(f"ds_read_b128 {R(blk(mi,i)+4,4)}, v{t0} offset:{4096*mi+1024*i}")
    for mi in range(2):
        k.e(f"s_waitcnt lgkmcnt({8*(1-mi)})")
        for i in range(4):
            k.e(f"buffer_store_dwordx4 {R(blk(mi,i)+4,4)}, v{t1}, {S4(sP)}, s{sO} offen"); k.e(f"s_add_u32 s{sO}, s{sO}, 8192")
    k.stamp(); k.stamp_end(sw); k.e("s_endpgm"); return k, f"grid=(256,1,1) block=(256,1,1) lds={g.NS*g.STG}"

def k_ln2():
    k = K("ln2_kernel"); guard(k, 512)
    sX = k.srd(0, MB2); sP = k.srd(WS, 0x800000, O_PART); sM = k.srd(WS, 12288, O_MOD); sX1 = k.srd(WS, MB2, O_X1); sH = k.srd(WS, MB2, O_H2)
    vl, sw = lane_setup(k); k.srd_fin()
    v16, v32 = k.v(), k.v(); sRow, sT, sU = k.s(), k.s(), k.s()
    p = k.v(32, 4); xr = k.v(4, 4); ga, sh, sc, x = (k.v(8, 4) for _ in range(4)); t = k.v(2); o = k.v(4, 4); o2 = k.v(4, 4)
    k.e(f"v_lshlrev_b32 v{v16}, 4, v{vl}"); k.e(f"v_lshlrev_b32 v{v32}, 5, v{vl}")
    k.e(f"s_lshl_b32 s{sRow}, s2, 2"); k.e(f"s_add_u32 s{sRow}, s{sRow}, s{sw}"); k.e(f"s_lshl_b32 s{sRow}, s{sRow}, 10"); k.e(f"s_mov_b32 s{sT}, s{sRow}")
    pr = k.v(16, 4)
    for i in range(4):
        k.e(f"buffer_load_dwordx4 {R(pr+4*i,4)}, v{v16}, {S4(sP)}, s{sT} offen")
        k.e(f"s_add_u32 s{sT}, s{sT}, 0x200000")
    k.e(f"buffer_load_dwordx4 {R(xr,4)}, v{v16}, {S4(sX)}, s{sRow} offen")
    for i, d in enumerate((ga, sh, sc)):
        k.e(f"s_mov_b32 s{sU}, {2048*(i+2)}")
        for h in range(2): k.e(f"buffer_load_dwordx4 {R(d+4*h,4)}, v{v32}, {S4(sM)}, s{sU} offen offset:{16*h}")
    k.e("s_waitcnt vmcnt(4)")
    for i in range(4): unpack8(k, pr + 4 * i, p + 8 * i)
    for i in range(1, 4):
        for j in range(8): k.e(f"v_add_f32 v{p+j}, v{p+j}, v{p+8*i+j}")
    pack(k, p, o, 4); unpack8(k, o, p); unpack8(k, xr, x)
    for j in range(8): k.e(f"v_mul_f32 v{p+j}, v{p+j}, v{ga+j}")
    pack(k, p, o, 4); unpack8(k, o, p)
    for j in range(8): k.e(f"v_add_f32 v{x+j}, v{x+j}, v{p+j}")
    pack(k, x, o, 4); unpack8(k, o, x)
    k.e(f"buffer_store_dwordx4 {R(o,4)}, v{v16}, {S4(sX1)}, s{sRow} offen"); k.e("s_waitcnt vmcnt(1)")
    k.e("s_waitcnt vmcnt(0)")
    layernorm(k, x, sh, sc, t, o2)
    k.e(f"buffer_store_dwordx4 {R(o2,4)}, v{v16}, {S4(sH)}, s{sRow} offen")
    k.stamp(); k.stamp_end(sw); k.e("s_endpgm"); return k, "grid=(512,1,1) block=(256,1,1) lds=0"

def k_gu():
    k = K("gu_kernel"); guard(k, 224)
    sA = k.srd(WS, MB2, O_H2); sG = k.srd(56, 512 * 3584); sU = k.srd(64, 512 * 3584); sH = k.srd(WS, 2048 * 3584, O_HH)
    vl, sw = lane_setup(k); k.srd_fin()
    g = Gemm(k, vl, sw, 8, 2, 4, 64, 64, 8, 3, 2, 128, 1024, 3584, False, 1, 4); g.setup(b_extra=lambda s: 0)
    acc = [[k.v(16, 4) for _ in range(2)] for _ in range(2)]
    sMb, sNb, sA0, sB0, sO, sT = (k.s() for _ in range(6))
    k.e(f"s_and_b32 s{sMb}, s2, 15"); k.e(f"s_lshr_b32 s{sNb}, s2, 4")
    k.e(f"s_lshl_b32 s{sA0}, s{sMb}, 17"); k.e(f"s_lshl_b32 s{sB0}, s{sNb}, 8")
    g.run(acc, 'CT', sA, [sG, sU], sA0, sB0)
    t0, t1, t2 = g.tmp; pk = g.fr[0][0]
    k.e(f"s_lshl_b32 s{sO}, s{sMb}, 1"); k.e(f"s_add_u32 s{sO}, s{sO}, s{g.swm}"); k.e(f"s_mul_i32 s{sO}, s{sO}, {64*3584}")
    k.e(f"s_add_u32 s{sO}, s{sO}, s{sB0}"); k.e(f"s_lshl_b32 s{sT}, s{g.swn}, 6"); k.e(f"s_add_u32 s{sO}, s{sO}, s{sT}"); k.e(f"s_add_u32 s{sT}, s{sO}, {32*3584}")
    k.e(f"v_lshrrev_b32 v{t0}, 5, v{vl}"); k.e(f"v_lshlrev_b32 v{t0}, 4, v{t0}"); k.e(f"v_and_b32 v{t1}, 31, v{vl}"); k.e(f"v_mul_u32_u24 v{t1}, 3584, v{t1}"); k.e(f"v_add_u32 v{t0}, v{t0}, v{t1}")
    for mi in range(2):
        for hf in range(2):
            a, b = acc[mi][0] + 8 * hf, acc[mi][1] + 8 * hf; p = pk[2 * mi + hf]
            pack(k, a, p, 4); unpack8(k, p, a); pack(k, b, p, 4); unpack8(k, p, b)
            for j in range(8): k.e(f"v_mul_f32 v{a+j}, v{a+j}, v{b+j}")
            pack(k, a, p, 4)
            k.e(f"buffer_store_dwordx4 {R(p,4)}, v{t0}, {S4(sH)}, s{sT if mi else sO} offen offset:{32*hf}")
    k.stamp(); k.stamp_end(sw); k.e("s_endpgm"); return k, f"grid=(224,1,1) block=(512,1,1) lds={3*g.STG}"

def k_dn():
    k = K("dn_kernel"); guard(k, 256)
    sA = k.srd(WS, 2048 * 3584, O_HH); sB = k.srd(72, 1792 * 1024); sX1 = k.srd(WS, MB2, O_X1); sM = k.srd(WS, 12288, O_MOD); sOut = k.srd(96, MB2)
    vl, sw = lane_setup(k); k.srd_fin()
    g = Gemm(k, vl, sw, 4, 2, 2, 32, 32, 28, int(os.environ.get('DNS','4')), 4, 64, 3584, 1024, True, 1, 1); g.setup()
    acc = [[k.v(16, 4)]]; a = acc[0][0]; xr = k.v(8, 4); gb = k.v(16, 4); x = k.v(8, 4); vo, vg = k.v(), k.v()
    sMb, sNb, sA0, sB0, sO, sT = (k.s() for _ in range(6))
    k.e(f"s_and_b32 s{sMb}, s2, 7"); k.e(f"s_lshl_b32 s{sMb}, s{sMb}, 2"); k.e(f"s_bfe_u32 s{sT}, s2, 0x20003"); k.e(f"s_add_u32 s{sMb}, s{sMb}, s{sT}")
    k.e(f"s_lshr_b32 s{sNb}, s2, 5"); k.e(f"s_mul_i32 s{sA0}, s{sMb}, {64*3584}"); k.e(f"s_lshl_b32 s{sB0}, s{sNb}, 7")
    k.e(f"s_lshl_b32 s{sO}, s{sMb}, 16"); k.e(f"s_lshl_b32 s{sT}, s{g.swm}, 15"); k.e(f"s_add_u32 s{sO}, s{sO}, s{sT}")
    k.e(f"s_lshl_b32 s{sT}, s{g.swn}, 6"); k.e(f"s_add_u32 s{sT}, s{sT}, s{sB0}"); k.e(f"s_add_u32 s{sO}, s{sO}, s{sT}")
    k.e(f"s_lshl_b32 s{sT}, s{sT}, 1"); k.e(f"s_add_u32 s{sT}, s{sT}, {5*2048}")
    k.e(f"v_lshrrev_b32 v{vg}, 5, v{vl}"); k.e(f"v_lshlrev_b32 v{vo}, 4, v{vg}"); k.e(f"v_lshlrev_b32 v{vg}, 5, v{vg}")
    k.e(f"v_and_b32 v{x}, 31, v{vl}"); k.e(f"v_lshl_add_u32 v{vo}, v{x}, 10, v{vo}")
    for hf in range(2):
        k.e(f"buffer_load_dwordx4 {R(xr+4*hf,4)}, v{vo}, {S4(sX1)}, s{sO} offen offset:{32*hf}")
        for q in range(2): k.e(f"buffer_load_dwordx4 {R(gb+8*hf+4*q,4)}, v{vg}, {S4(sM)}, s{sT} offen offset:{64*hf+16*q}")
    dbg = int(os.environ.get('DBG', '1')); assert g.KT % dbg == 0 and g.NS % dbg == 0
    g.run(acc, 'CT', sA, [sB], sA0, sB0, bg=dbg, fpm=dbg, rpm=int(os.environ.get('DRPM', '2')))
    pk = g.fr[0][0]
    for hf in range(2):
        b = a + 8 * hf; p = pk[hf]
        for j in range(4): k.e(f"v_permlane32_swap_b32 v{b+j}, v{b+4+j}")
        k.e("s_nop 1"); pack(k, b, p, 4); unpack8(k, p, b)
        for j in range(8): k.e(f"v_mul_f32 v{b+j}, v{b+j}, v{gb+8*hf+j}")
        pack(k, b, p, 4); unpack8(k, p, b); unpack8(k, xr + 4 * hf, x)
        for j in range(8): k.e(f"v_add_f32 v{b+j}, v{b+j}, v{x+j}")
        pack(k, b, p, 4)
        k.e(f"buffer_store_dwordx4 {R(p,4)}, v{vo}, {S4(sOut)}, s{sO} offen offset:{32*hf}")
    k.stamp(); k.stamp_end(sw); k.e("s_endpgm"); return k, f"grid=(256,1,1) block=(256,1,1) lds={g.NS*g.STG}"

from attn import k_attn
def main(out):
    ks = [k_mod(), k_kv(), k_attn(), k_op(), k_ln2(), k_gu(), k_dn()]
    ref = open(f"cdna_kernels/{NAME}.s.ref").read().split("\n")
    hdr = [l for l in ref if l.startswith(";") and "@launch" not in l][:18]
    hdr += [f"; @launch kernel={k.name} {g}" for k, g in ks]
    tx = [k.text() for k, _ in ks]
    s = "\n".join(hdr + ['.amdgcn_target "amdgcn-amd-amdhsa--gfx950"', ".text"] + [t[0] for t in tx] + ['.section .rodata,"a"'] + [t[1] for t in tx]) + "\n"
    open(out, "w").write(s)
    for k, g in ks: print(k.name, "vgpr", k.vmax, "sgpr", k.sn, "lines", len(k.L), g)
if __name__ == "__main__": main(sys.argv[1] if len(sys.argv) > 1 else f"cdna_kernels/{NAME}.s")
```

```python
from core import *
import struct
def fh(x): return "0x%08x" % struct.unpack("<I", struct.pack("<f", x))[0]
WS = 112; O_H1, O_KI, O_VI, O_CTX = 0x10000, 0x400000, 0x1400000, 0x2400000
MB2, MB16 = 0x200000, 0x1000000
import os
X = os.environ.get('X', '')
def k_attn(NF=8, LA=6):
    k = K("attn_kernel"); e = k.e
    def st():
        if os.environ.get('ST') != 'at': return
        l = k.newlab(); e(f"s_cmp_eq_u32 s{sJ}, 3"); e(f"s_cbranch_scc0 {l}"); q = list(k.lq); k.stamp(); k.lq = q; k.label(l)
    k.stamp(); e("s_cmp_lt_u32 s2, 256"); l = k.newlab(); e(f"s_cbranch_scc1 {l}"); e("s_endpgm"); k.label(l)
    sA = k.srd(WS, MB2, O_H1); sB = k.srd(16, 0x400000); sKI = k.srd(WS, MB16, O_KI); sVI = k.srd(WS, MB16, O_VI); sCX = k.srd(WS, MB16, O_CTX)
    sKV = k.srd(WS, 2 * MB16, O_KI); PFD = int(os.environ.get('PFD', '2'))
    sPF = [k.srd(40, 0x400000), k.srd(56, 512 * 3584), k.srd(64, 512 * 3584), k.srd(72, 1792 * 1024)]
    vl, sw = lane_setup(k); k.srd_fin()
    sHd, sI, sI2, sJ, sKo, sM0, sG, sRw, sT, sZ, sB0, sBlk = (k.s() for _ in range(12)); sX = k.s(4); sC = k.s(2, 2); sCm = k.s(8, 2)
    e(f"s_and_b32 s{sHd}, s2, 7"); e(f"s_lshl_b32 s{sHd}, s{sHd}, 2"); e(f"s_bfe_u32 s{sT}, s2, 0x20003"); e(f"s_add_u32 s{sHd}, s{sHd}, s{sT}")
    e(f"s_lshr_b32 s{sI2}, s2, 5"); e(f"s_sub_u32 s{sI}, 15, s{sI2}")
    e(f"s_lshl_b32 s{sX}, s{sI}, 17"); e(f"s_add_u32 s{sX+1}, s{sX}, 65536"); e(f"s_lshl_b32 s{sX+2}, s{sI2}, 17"); e(f"s_add_u32 s{sX+3}, s{sX+2}, 65536")
    e(f"s_mov_b32 s{sZ}, 0"); e(f"s_lshl_b32 s{sB0}, s{sHd}, 8"); e(f"s_lshr_b32 s{sG}, s{sw}, 2"); e(f"s_and_b32 s{sRw}, s{sw}, 3")
    e(f"s_mov_b32 s{sC}, {fh(0.12751743)}"); e(f"s_mov_b32 s{sC+1}, s{sC}")
    al = k.v(2, 2); O = k.v(64, 4); S = k.v(64, 4); P = k.v(16, 4); Q = k.v(32, 4); F = k.v(4 * NF, 4); NM = k.v(16, 4)
    vK = [k.v() for _ in range(8)]; vV = [k.v() for _ in range(4)]
    vDma, vD, vm, vmx, vt, vni, vQ, vSt, vH = (k.v() for _ in range(9)); vPF = 0; nm = NM + 2; ls = k.v(2, 2); ml = k.v(2, 2)
    e(f"s_lshl_b32 s{sT}, s2, 13"); e(f"v_lshlrev_b32 v{vPF}, 4, v0"); e(f"v_add_u32 v{vPF}, s{sT}, v{vPF}")
    sv = k.vn; k.vn = S + 40; sVo = k.s()
    g = Gemm(k, vl, sw, 8, 8, 1, 32, 128, 8, 3, 1, 128, 1024, 8192, False, 0, 1, base=16384); g.setup(a_extra=lambda j: f"s{sX+j}", frbase=S)
    assert k.vn <= Q; k.vn = sv; t0, t1, t2 = vmx, vt, vm
    e(f"v_lshlrev_b32 v{vDma}, 4, v{vl}"); e(f"s_lshl_b32 s{sM0}, s{sRw}, 12"); e(f"v_add_u32 v{vDma}, s{sM0}, v{vDma}"); e(f"s_lshl_b32 s{sM0}, s{sw}, 12")
    e(f"v_lshrrev_b32 v{t0}, 5, v{vl}"); e(f"v_and_b32 v{t1}, 31, v{vl}"); e(f"s_lshl_b32 s{sT}, s{sG}, 14")
    e(f"v_and_b32 v{t2}, 15, v{vl}"); e(f"v_xor_b32 v{t2}, v{t2}, v{t0}"); e(f"v_lshlrev_b32 v{t2}, 4, v{t2}"); e(f"v_lshl_add_u32 v{t2}, v{t1}, 8, v{t2}"); e(f"v_add_u32 v{t2}, s{sT}, v{t2}")
    for s in range(8): e(f"v_xor_b32 v{vK[s]}, {s<<5}, v{t2}")
    e(f"s_add_u32 s{sT}, s{sT}, 65536")
    e(f"v_bfe_u32 v{t2}, v{vl}, 1, 3"); e(f"v_xor_b32 v{t2}, v{t2}, v{t0}"); e(f"v_lshlrev_b32 v{t2}, 4, v{t2}"); e(f"v_lshl_add_u32 v{t2}, v{t1}, 7, v{t2}"); e(f"v_add_u32 v{t2}, s{sT}, v{t2}")
    for s in range(4): e(f"v_xor_b32 v{vV[s]}, {s<<5}, v{t2}")
    e(f"s_lshl_b32 s{sT}, s{sRw}, 5"); e(f"v_add_u32 v{vD}, s{sT}, v{t1}"); e(f"v_lshlrev_b32 v{vSt}, 13, v{vD}"); e(f"v_lshl_add_u32 v{vSt}, v{t0}, 4, v{vSt}")
    e(f"v_lshlrev_b32 v{t0}, 2, v{t0}"); e(f"v_sub_u32 v{vD}, v{vD}, v{t0}")
    e(f"s_lshl_b32 s{sT}, s{sRw}, 13"); e(f"v_lshlrev_b32 v{vH}, 7, v{vl}"); e(f"v_add_u32 v{vH}, s{sT}, v{vH}")
    e(f"s_mul_i32 s{sT}, s{sG}, {MB16-32768}"); e(f"s_add_u32 s{sT}, s{sT}, 32768"); e(f"v_add_u32 v{vH}, s{sT}, v{vH}")
    e(f"v_mov_b32 v{vni}, 0xff800000")
    e(f"s_lshl_b32 s{sT}, s{sRw}, 13"); e(f"s_add_u32 s{sT}, s{sT}, 131072"); e(f"v_lshlrev_b32 v{vQ}, 4, v{vl}"); e(f"v_add_u32 v{vQ}, s{sT}, v{vQ}")
    sNB, sJmp, sDg, sU = sBlk, sVo, k.s(), k.s()
    e(f"s_lshl_b32 s{sKo}, s{sHd}, 19"); e(f"s_lshl_b32 s{sNB}, s{sI2}, 1"); e(f"s_add_u32 s{sNB}, s{sNB}, 2"); e(f"s_sub_u32 s{sJmp}, 17, s{sNB}")
    e(f"s_cmp_eq_u32 s{sG}, 0"); e(f"s_cselect_b32 s{sNB}, 99, s{sNB}"); e(f"s_cselect_b32 s{sDg}, s{sI}, s{sI2}"); e(f"s_lshl_b32 s{sDg}, s{sDg}, 1"); e(f"s_mov_b32 s{sJ}, 0")
    def tile(add): return [f"s_add_u32 s{sT}, s{sJ}, {add}", f"s_cmp_ge_u32 s{sT}, s{sNB}", f"s_cselect_b32 s{sU}, s{sJmp}, 0", f"s_add_u32 s{sU}, s{sU}, s{sT}"]
    def dmal(isV, par, add):
        return tile(add) + [f"s_lshl_b32 s{sU}, s{sU}, 14", f"s_add_u32 m0, s{sM0}, {65536*isV + 32768*par}", f"s_add_u32 s{sU}, s{sU}, s{sKo}"] + \
            [f"buffer_load_dwordx4 v{vDma}, {S4(sVI if isV else sKI)}, s{sU} offen offset:{1024*i} lds" for i in range(4)]
    def dma(isV, par, add):
        l = k.newlab(); e(f"s_cmp_le_u32 s{sJ}, {16-add}"); e(f"s_cbranch_scc0 {l}")
        for i in dmal(isV, par, add): e(i)
        k.label(l)
    def rdK(n, par): k.lds(f"ds_read_b128 {R(F+4*(n%NF),4)}, v{vK[n//2]} offset:{32768*par+8192*(n%2)}", n)
    def rdV(n, par): k.lds(f"ds_read_b128 {R(F+4*(n%NF),4)}, v{vV[n//4]} offset:{32768*par+4096*(n%4)}", 16 + n)
    def qk(n, Sb, c0):
        k.need({n}); d = R(Sb + 16 * (n % 2), 16)
        e(f"v_mfma_f32_32x32x16_bf16 {d}, {R(F+4*(n%NF),4)}, {R(Q+4*(n//2),4)}, {c0 if n < 2 else d}")
    def pv(n):
        k.need({16 + n}); d = R(O + 16 * (n % 4), 16)
        e(f"v_mfma_f32_32x32x16_bf16 {d}, {R(F+4*(n%NF),4)}, {R(P+4*(n//4),4)}, {d}")
    def mask(Sb, add, rq):
        lm = k.newlab()
        for i in tile(add): e(i)
        e(f"s_cmp_ge_u32 s{sU}, s{sDg}"); e(f"s_cbranch_scc0 {lm}")
        e(f"s_sub_u32 s{sU}, s{sU}, s{sDg}"); e(f"s_lshl_b32 s{sU}, s{sU}, 6"); e(f"v_subrev_u32 v{vt}, s{sU}, v{vD}")
        if rq:
            l = k.newlab(); e(f"s_add_u32 s{sT}, s{sJ}, 2"); e(f"s_cmp_eq_u32 s{sT}, s{sNB}"); e(f"s_cbranch_scc0 {l}")
            for i in range(8): e(f"ds_read_b128 {R(Q+4*i,4)}, v{vQ} offset:{1024*i}")
            k.label(l)
        for r0 in range(0, 32, 4):
            for r in range(r0, r0 + 4): e(f"v_cmp_gt_i32 s[{sCm+2*(r%4)}:{sCm+2*(r%4)+1}], {32*(r//16)+8*((r%16)//4)+r%4}, v{vt}")
            for r in range(r0, r0 + 4): e(f"v_cndmask_b32 v{Sb+r}, v{Sb+r}, v{vni}, s[{sCm+2*(r%4)}:{sCm+2*(r%4)+1}]")
        e("s_waitcnt lgkmcnt(0)"); k.label(lm)
    def smx(Sb):
        o = []
        for q in range(4):
            b = Sb + 8 * q
            o += [(f"v_exp_f32 v{b+i}, v{b+i}", 2) for i in range(8)]
            o += [(f"v_cvt_pk_bf16_f32 v{P+4*q+i}, v{b+2*i}, v{b+2*i+1}", 1) for i in range(4)]
            o += [(f"v_add_f32 v{ls+i%2}, v{ls+i%2}, v{b+i}", 1) for i in range(8)]
        return o
    def rmax(Sb):
        o = [f"v_max3_f32 v{vmx}, v{Sb}, v{Sb+1}, v{Sb+2}", f"v_max3_f32 v{vt}, v{Sb+3}, v{Sb+4}, v{Sb+5}"]
        for r in range(6, 30, 4): o += [f"v_max3_f32 v{vmx}, v{vmx}, v{Sb+r}, v{Sb+r+1}", f"v_max3_f32 v{vt}, v{vt}, v{Sb+r+2}, v{Sb+r+3}"]
        o += [f"v_max3_f32 v{vmx}, v{vmx}, v{Sb+30}, v{Sb+31}", f"v_max_f32 v{vmx}, v{vmx}, v{vt}", f"v_mov_b32 v{vt}, v{vmx}", "s_nop 1",
              f"v_permlane32_swap_b32 v{vt}, v{vmx}", "s_nop 1", f"v_max_f32 v{vmx}, v{vmx}, v{vt}"]
        return [(i, 1) for i in o]
    def shift(Sb):
        e(f"v_add_f32 v{vm}, v{vm}, v{vmx}")
        for i in range(32): e(f"v_sub_f32 v{Sb+i}, v{Sb+i}, v{vmx}")
        for i in range(16): e(f"v_sub_f32 v{NM+i}, 0, v{vm}")
    g.run([[O + 16 * i for i in range(4)]], 'CT', sA, [sB], sZ, sB0, tail=[dmal(0, 0, 0), dmal(0, 1, 1)])
    for i in range(64): e(f"v_mul_f32 v{O+i}, s{sC}, v{O+i}")
    for i in range(32): e(f"v_cvt_pk_bf16_f32 v{Q+i}, v{O+2*i}, v{O+2*i+1}")
    e("s_waitcnt vmcnt(0)"); e("s_barrier"); k.stamp()
    e(f"s_cmp_eq_u32 s{sG}, 0"); lp = k.newlab(); e(f"s_cbranch_scc0 {lp}")
    for i in range(8): e(f"ds_write_b128 v{vQ}, {R(Q+4*i,4)} offset:{1024*i}")
    k.label(lp); k.lq = []
    if "p" not in X:
        e(f"s_cmp_eq_u32 s{sG}, {0 if 'P' in X else 1}"); lp = k.newlab(); e(f"s_cbranch_scc0 {lp}"); e("s_setprio 1"); k.label(lp)
    LL = [k.newlab("loop") for _ in range(2)]; LT = k.newlab("tail")
    for n in range(NF): rdK(n, 0)
    dma(1, 0, 0)
    for n in range(16):
        qk(n, S, '0')
        if n + NF < 16: rdK(n + NF, 0)
        for i in range(4 * n, 4 * n + 4): e(f"v_mov_b32 v{O+i}, 0")
    e(f"v_mov_b32 v{ls}, 0"); e(f"v_mov_b32 v{ls+1}, 0"); e(f"v_mov_b32 v{vm}, 0")
    e("s_barrier"); k.lq = []
    for n in range(NF): rdK(n, 1)
    dma(0, 0, 2); dma(1, 1, 1); mask(S, 0, False)
    for i, _ in rmax(S): e(i)
    e(f"v_max_f32 v{vmx}, {fh(-1e30)}, v{vmx}"); shift(S); k.stamp()
    DG = int(os.environ.get('DG', '1')); BG = int(os.environ.get('BG', '10'))
    for par in range(2):
        Sc, Sn = S + 32 * par, S + 32 * (1 - par)
        k.label(LL[par]); k.lq = list(range(NF)); st()
        if par == 0: e(f"s_cmp_eq_u32 s{sJ}, 16"); e(f"s_cbranch_scc1 {LT}")
        items = smx(Sc) + [("MASK", 0)] + rmax(Sn); tot = sum(c for _, c in items); done = 0; kq = list(range(NF))
        for gap in range(32):
            n = gap % 16
            if n == BG:
                st(); e("s_waitcnt vmcnt(8) lgkmcnt(0)"); l = k.newlab(); e(f"s_cmp_lt_u32 s{sJ}, 14"); e(f"s_cbranch_scc1 {l}"); e("s_waitcnt vmcnt(0)"); k.label(l)
                e("s_barrier"); k.lq = []; kq = list(range(NF)); st()
            if gap < 16:
                qk(n, Sn, R(NM, 16))
                if n + NF < 16: rdK(n + NF, 1 - par)
                elif n >= BG:
                    for _ in range(2):
                        if kq and kq[0] + NF <= n: rdV(kq.pop(0), par)
                if n == BG + DG and 'd' not in X: dma(0, 1 - par, 3)
            else:
                pv(n)
                if n + NF < 16: rdV(n + NF, par)
                elif n >= BG:
                    for _ in range(2):
                        if kq and kq[0] + NF <= n: rdK(kq.pop(0), par)
                if n == BG + DG and 'd' not in X: dma(1, par, 2)
                if n == BG + 4 and par == 1 and "f" not in X:
                    l = k.newlab(); e(f"s_cmp_eq_u32 s{sJ}, 7"); e(f"s_cbranch_scc0 {l}"); e(f"s_mov_b32 s{sT}, 0x200000")
                    for p, so in [(p, '0') for p in sPF] + [(sPF[0], f"s{sT}")]: e(f"buffer_load_dwordx2 {R(ml,2)}, v{vPF}, {S4(p)}, {so} offen")
                    k.label(l)
            while items and done < tot * (gap + 1) / 31.0:
                i, c = items.pop(0); done += c
                if i == "MASK": assert gap >= 18; mask(Sn, 1, True)
                else: e(i)
        assert not kq and not items
        lr, lsw = k.newlab(), k.newlab(); e(f"v_cmp_lt_f32 vcc, {fh(8.0)}, v{vmx}"); e(f"s_add_u32 s{sJ}, s{sJ}, 1")
        if par: e(f"s_cmp_eq_u32 s{sJ}, s{sNB}"); e(f"s_cbranch_scc1 {lsw}")
        else: e("s_nop 0")
        e(f"s_cbranch_vccz {LL[0] if par else lr}")
        e(f"v_max_f32 v{vmx}, 0, v{vmx}"); e(f"v_sub_f32 v{al}, 0, v{vmx}"); e(f"v_exp_f32 v{al}, v{al}"); shift(Sn)
        for r in [ls, ls + 1] + list(range(O, O + 64)): e(f"v_mul_f32 v{r}, v{r}, v{al}")
        if par:
            e(f"s_branch {LL[0]}"); k.label(lsw)
            e(f"v_add_f32 v{al}, v{ls}, v{ls+1}"); e(f"v_mov_b32 v{vt}, v{al}"); e(f"v_mov_b32 v{vm}, 0"); e(f"v_max_f32 v{vmx}, {fh(-1e30)}, v{vmx}")
            e(f"v_permlane32_swap_b32 v{vt}, v{al}"); shift(Sn); e(f"v_add_f32 v{al}, v{al}, v{vt}"); e(f"v_rcp_f32 v{al}, v{al}")
            e(f"v_mov_b32 v{ls}, 0"); e(f"v_mov_b32 v{ls+1}, 0"); e(f"s_lshl_b32 s{sT}, s{sI2}, 20"); e(f"s_add_u32 s{sT}, s{sT}, s{sB0}")
            for q in range(8):
                for i in range(8 * q, 8 * q + 8): e(f"v_mul_f32 v{O+i}, v{O+i}, v{al}")
                for i in range(4): e(f"v_cvt_pk_bf16_f32 v{Sc+4*q+i}, v{O+8*q+2*i}, v{O+8*q+2*i+1}")
                e(f"buffer_store_dwordx4 {R(Sc+4*q,4)}, v{vSt}, {S4(sCX)}, s{sT} offen offset:{32*q}")
            for i in range(64): e(f"v_mov_b32 v{O+i}, 0")
            e(f"s_branch {LL[0]}")
        else:
            k.label(lr); e(f"s_add_u32 s{sT}, s{sJ}, 1"); e(f"s_cmp_eq_u32 s{sT}, s{sNB}"); e(f"s_cbranch_scc0 {LL[1]}")
            for i in range(16): e(f"v_mov_b32 v{NM+i}, 0")
            e(f"s_lshl_b32 s{sDg}, s{sI}, 1"); e("s_nop 0")
    k.label(LT); k.lq = list(range(NF)); items = smx(S); k.stamp()
    for n in range(NF): rdV(n, 0)
    for i, _ in items[:20]: e(i)
    for n in range(16):
        pv(n)
        if n + NF < 16: rdV(n + NF, 0)
        for i, _ in items[20 + 5 * n:25 + 5 * n]: e(i)
    k.lq = []; k.stamp()
    t0, t1 = NM, NM + 1
    e(f"v_add_f32 v{ml+1}, v{ls}, v{ls+1}"); e(f"v_mov_b32 v{vt}, v{ml+1}"); e(f"v_mov_b32 v{ml}, v{vm}"); e("s_nop 0")
    e(f"v_permlane32_swap_b32 v{vt}, v{ml+1}"); e("s_nop 1"); e(f"v_add_f32 v{ml+1}, v{ml+1}, v{vt}")
    e(f"s_lshl_b32 s{sT}, s{sw}, 13"); e(f"s_add_u32 s{sT}, s{sT}, 98304"); e(f"v_lshlrev_b32 v{t0}, 4, v{vl}"); e(f"v_add_u32 v{t0}, s{sT}, v{t0}")
    e(f"s_lshl_b32 s{sT}, s{sw}, 9"); e(f"s_add_u32 s{sT}, s{sT}, 32768"); e(f"v_lshlrev_b32 v{t1}, 3, v{vl}"); e(f"v_add_u32 v{t1}, s{sT}, v{t1}")
    e(f"ds_write_b64 v{t1}, {R(ml,2)}")
    lg, ld = k.newlab(), k.newlab(); e(f"s_cmp_eq_u32 s{sG}, 0"); e(f"s_cbranch_scc1 {lg}")
    for i in range(8): e(f"ds_write_b128 v{t0}, {R(O+4*i,4)} offset:{1024*i}")
    e("s_nop 1")
    for i in range(32): e(f"v_mov_b32 v{O+i}, v{O+32+i}")
    e(f"s_branch {ld}"); k.label(lg)
    for i in range(8): e(f"ds_write_b128 v{t0}, {R(O+32+4*i,4)} offset:{1024*i}")
    k.label(ld)
    e(f"v_xor_b32 v{t0}, 0x38000, v{t0}"); e(f"v_xor_b32 v{t1}, 0x800, v{t1}"); e("s_waitcnt lgkmcnt(0)"); e("s_barrier")
    e(f"ds_read_b64 {R(ls,2)}, v{t1}")
    for i in range(8): e(f"ds_read_b128 {R(S+4*i,4)}, v{t0} offset:{1024*i}")
    wa, ra, ga, u0, u1, rb = O + 32, O + 36, O + 37, O + 38, O + 39, O + 40
    e(f"s_lshl_b32 s{sJ}, s{sw}, 13"); e(f"s_add_u32 s{sJ}, s{sJ}, 98304"); e(f"s_xor_b32 s{sJ}, s{sJ}, 0x38000")
    e(f"v_lshrrev_b32 v{u0}, 5, v{vl}"); e(f"v_and_b32 v{u1}, 7, v{vl}"); e(f"v_xor_b32 v{u0}, v{u0}, v{u1}"); e(f"v_lshlrev_b32 v{u0}, 4, v{u0}")
    e(f"v_and_b32 v{ra}, 31, v{vl}"); e(f"v_lshl_add_u32 v{u0}, v{ra}, 7, v{u0}"); e(f"v_add_u32 v{u0}, s{sJ}, v{u0}")
    for i in range(4): e(f"v_xor_b32 v{wa+i}, {i<<5}, v{u0}")
    e(f"v_lshrrev_b32 v{u0}, 3, v{vl}"); e(f"v_xor_b32 v{ra}, v{u0}, v{u1}"); e(f"v_lshlrev_b32 v{ra}, 4, v{ra}"); e(f"v_lshl_add_u32 v{ra}, v{u0}, 7, v{ra}"); e(f"v_add_u32 v{ra}, s{sJ}, v{ra}")
    e(f"s_lshl_b32 s{sJ}, s{sRw}, 5"); e(f"v_add_u32 v{ga}, s{sJ}, v{u0}"); e(f"v_lshlrev_b32 v{ga}, 13, v{ga}"); e(f"v_lshl_add_u32 v{ga}, v{u1}, 4, v{ga}")
    e("s_waitcnt lgkmcnt(8)")
    e(f"v_max_f32 v{vmx}, v{ml}, v{ls}"); e(f"v_sub_f32 v{al}, v{ml}, v{vmx}"); e(f"v_sub_f32 v{nm}, v{ls}, v{vmx}")
    e(f"v_exp_f32 v{al}, v{al}"); e(f"v_exp_f32 v{nm}, v{nm}"); e("s_nop 0")
    e(f"v_mul_f32 v{vt}, v{al}, v{ml+1}"); e(f"v_fmac_f32 v{vt}, v{nm}, v{ls+1}"); e(f"v_rcp_f32 v{vt}, v{vt}"); e("s_nop 0")
    e(f"v_mul_f32 v{al}, v{al}, v{vt}"); e(f"v_mul_f32 v{nm}, v{nm}, v{vt}"); e(f"v_mov_b32 v{al+1}, v{al}"); e(f"v_mov_b32 v{nm+1}, v{nm}")
    e(f"s_lshl_b32 s{sT}, s{sI}, 20"); e(f"s_add_u32 s{sT}, s{sT}, s{sB0}"); e(f"s_lshl_b32 s{sJ}, s{sG}, 7"); e(f"s_add_u32 s{sT}, s{sT}, s{sJ}")
    e("s_waitcnt lgkmcnt(0)")
    for q in range(4):
        for i in range(8 * q, 8 * q + 8, 2):
            e(f"v_pk_mul_f32 {R(O+i,2)}, {R(O+i,2)}, {R(al,2)}"); e(f"v_pk_fma_f32 {R(O+i,2)}, {R(S+i,2)}, {R(nm,2)}, {R(O+i,2)}")
            e(f"v_cvt_pk_bf16_f32 v{P+i//2}, v{O+i}, v{O+i+1}")
        e(f"ds_write_b128 v{wa+q}, {R(P+4*q,4)}")
    for i in range(4): e(f"ds_read_b128 {R(rb+4*i,4)}, v{ra} offset:{1024*i}")
    for i in range(4):
        e(f"s_waitcnt lgkmcnt({3-i})"); e(f"buffer_store_dwordx4 {R(rb+4*i,4)}, v{ga}, {S4(sCX)}, s{sT} offen{os.environ.get('AF', ' sc1')}"); e(f"s_add_u32 s{sT}, s{sT}, 65536")
    k.stamp()
    k.stamp_end(sw); e("s_endpgm"); return k, "grid=(256,1,1) block=(512,1,1) lds=163840"
```
